```python
import torch

def _softmax(x, axis=-1):
    return torch.softmax(x, dim=axis)
def _gelu(x):
    return torch.nn.functional.gelu(x, approximate="tanh")
def _silu(x):
    return torch.nn.functional.silu(x)
def _sigmoid(x):
    return torch.sigmoid(x)
def _layernorm(x, axis=-1, eps=1e-5):
    m = x.mean(dim=axis, keepdim=True)
    v = x.var(dim=axis, keepdim=True, unbiased=False)
    return (x - m) / torch.sqrt(v + eps)
def _scatter_add(tgt, idx, src, axis=0):
    return tgt.clone().index_add_(axis, idx, src)
def _segment_sum(src, seg, n):
    out = torch.zeros((n,) + src.shape[1:], dtype=src.dtype)
    return out.index_add_(0, seg, src)
def _pad(x, pw):
    flat = tuple(v for pair in reversed(pw) for v in pair)
    return torch.nn.functional.pad(x, flat)

kernel_name = 'interleave_layers__sliding_local_dilated__ssm_conv_s4__prompt'

def setup_inputs():

    _w = (lambda a: (lambda t: t.to(torch.bfloat16) if t.is_floating_point() else t)(torch.as_tensor(a)))
    def _A_setup():
        B, S, D = 1, 2048, 512
        return {
            "x": _w((lambda *s: torch.randn(*s, dtype=torch.bfloat16) * 0.05)(B, S, D)),
            "wqkv": _w((lambda *s: torch.randn(*s, dtype=torch.bfloat16) * 0.05)(D, 3 * D)),
            "wo": _w((lambda *s: torch.randn(*s, dtype=torch.bfloat16) * 0.05)(D, D)),
        }
    _A_in = _A_setup()

    def _B_setup():
        B, L, D, N = 1, 2048, 512, 128
        A_re = -(lambda _x: torch.exp(torch.as_tensor(_x)))((lambda *s: torch.randn(*s, dtype=torch.bfloat16) * 3.2)(D, N))
        A_im = torch.pi * (lambda *s: torch.randn(*s, dtype=torch.bfloat16) * 0.1)(D, N)
        B_re = (lambda *s: torch.randn(*s, dtype=torch.bfloat16) * 0.1)(D, N)
        B_im = (lambda *s: torch.randn(*s, dtype=torch.bfloat16) * 0.1)(D, N)
        C_re = (lambda *s: torch.randn(*s, dtype=torch.bfloat16) * 0.1)(D, N)
        C_im = (lambda *s: torch.randn(*s, dtype=torch.bfloat16) * 0.1)(D, N)
        log_dt = (lambda *s: torch.randn(*s, dtype=torch.bfloat16) * 0.1)(D) * 0.5 - 4.0
        Dskip = (lambda *s: torch.randn(*s, dtype=torch.bfloat16) * 0.1)(D)
        return {
            "u": _w((lambda *s: torch.randn(*s, dtype=torch.bfloat16) * 0.05)(B, L, D)),
            "A_re": _w(A_re),
            "A_im": _w(A_im),
            "B_re": _w(B_re),
            "B_im": _w(B_im),
            "C_re": _w(C_re),
            "C_im": _w(C_im),
            "log_dt": _w(log_dt),
            "Dskip": _w(Dskip),
        }
    _B_in = _B_setup()

    return {
        "A_x": _A_in["x"],
        "A_wqkv": _A_in["wqkv"],
        "A_wo": _A_in["wo"],
        "B_u": _B_in["u"],
        "B_A_re": _B_in["A_re"],
        "B_A_im": _B_in["A_im"],
        "B_B_re": _B_in["B_re"],
        "B_B_im": _B_in["B_im"],
        "B_C_re": _B_in["C_re"],
        "B_C_im": _B_in["C_im"],
        "B_log_dt": _B_in["log_dt"],
        "B_Dskip": _B_in["Dskip"],
    }

def reference(A_x, A_wqkv, A_wo, B_u, B_A_re, B_A_im, B_B_re, B_B_im, B_C_re, B_C_im, B_log_dt, B_Dskip):
    def _A_ref(x, wqkv, wo):
        B, S, D = x.shape
        H = 32; Dh = D // H
        W, dil = 8, 2
        qkv = (lambda x, *d: x.permute(*d))((x @ wqkv).reshape(B, S, 3, H, Dh), 2, 0, 3, 1, 4)
        q, k, v = qkv[0], qkv[1], qkv[2]
        scale = Dh ** -0.5
        pos = torch.arange(S)
        off = torch.arange(W) * dil
        idx = pos[:, None] - off[None, :]
        mask = idx >= 0
        idx_c = torch.where(mask, idx, 0).reshape(-1)
        kg = k[:, :, idx_c, :].reshape(B, H, S, W, Dh)
        vg = v[:, :, idx_c, :].reshape(B, H, S, W, Dh)
        logits = torch.einsum("bhsd,bhswd->bhsw", q, kg) * scale
        logits = torch.where(mask[None, None, :, :], logits, -1e9)
        attn = _softmax(logits, axis=-1)
        o = torch.einsum("bhsw,bhswd->bhsd", attn, vg)
        return (lambda x, *d: x.permute(*d))(o, 0, 2, 1, 3).reshape(B, S, D) @ wo

    def _B_ref(u, A_re, A_im, B_re, B_im, C_re, C_im, log_dt, Dskip):
        Bsz, L, D = u.shape
        dt = torch.exp(log_dt)[:, None]
        A = A_re + 1j * A_im
        Bc = B_re + 1j * B_im
        Cc = C_re + 1j * C_im
        logdA = dt * A
        dB = dt * Bc
        l = (lambda x, dt: x.to(dt))(torch.arange(L), A_re.dtype)
        P = torch.exp(logdA[:, :, None] * l[None, None, :])
        K = torch.einsum("dn,dnl,dn->dl", Cc, P, dB).real
        L2 = 2 * L
        Kp = _pad(K, ((0, 0), (0, L)))
        up = (lambda x, *d: x.permute(*d))(u, 0, 2, 1)
        up = _pad(up, ((0, 0), (0, 0), (0, L)))
        Kf = (lambda x, axes=(-2,-1): torch.fft.rfft2(x.float(), dim=axes))(Kp[:, None, :], axes=(-2, -1))
        Uf = (lambda x, axes=(-2,-1): torch.fft.rfft2(x.float(), dim=axes))(up[:, :, None, :], axes=(-2, -1))
        Yf = Uf * Kf[None, :, :, :]
        y = (lambda x, s, axes=(-2,-1): torch.fft.irfft2(x, s=s, dim=axes).to(torch.bfloat16))(Yf, (1, L2), axes=(-2, -1))[:, :, 0, :L]
        y = (lambda x, *d: x.permute(*d))(y, 0, 2, 1) + u * Dskip[None, None, :]
        return y

    x = A_x
    x = x + _A_ref(_layernorm(x, axis=-1), A_wqkv, A_wo)
    x = x + _B_ref(_layernorm(x, axis=-1), B_A_re, B_A_im, B_B_re, B_B_im, B_C_re, B_C_im, B_log_dt, B_Dskip)
    x = x + _A_ref(_layernorm(x, axis=-1), A_wqkv, A_wo)
    x = x + _B_ref(_layernorm(x, axis=-1), B_A_re, B_A_im, B_B_re, B_B_im, B_C_re, B_C_im, B_log_dt, B_Dskip)
    return x
```

```python
import re

TRANS = ("v_exp_f32", "v_log_f32", "v_rcp_f32", "v_rsq_f32", "v_sqrt_f32", "v_sin_f32", "v_cos_f32",
         "v_rcp_iflag_f32")

REG_RE = re.compile(r"^(-|abs\()?\s*([vas])(\d+)\)?$")
RNG_RE = re.compile(r"^(-|abs\()?\s*([vas])\[(\d+):(\d+)\]\)?$")


def regs_of(tok):
    tok = tok.strip()
    m = REG_RE.match(tok)
    if m:
        return [(m.group(2), int(m.group(3)))]
    m = RNG_RE.match(tok)
    if m:
        return [(m.group(2), i) for i in range(int(m.group(3)), int(m.group(4)) + 1)]
    if tok in ("vcc", "vcc_lo", "vcc_hi"):
        return [("vcc", 0)]
    if tok in ("exec", "exec_lo", "exec_hi"):
        return [("exec", 0)]
    if tok == "m0":
        return [("m0", 0)]
    return []


def split_ops(s):
    out, depth, cur = [], 0, ""
    for ch in s:
        if ch in "[(":
            depth += 1
        if ch in "])":
            depth -= 1
        if ch == "," and depth == 0:
            out.append(cur.strip())
            cur = ""
        else:
            cur += ch
    if cur.strip():
        out.append(cur.strip())
    return out


class Ins:
    __slots__ = ("text", "mn", "kind", "dst", "src", "srcA", "srcB", "srcC", "passes", "dpp", "sgemm",
                 "states", "wide_store_data", "lds_dma", "is_label")

    def __init__(self, text):
        self.text = text
        self.is_label = False
        self.dst, self.src = set(), set()
        self.srcA, self.srcB, self.srcC = set(), set(), set()
        self.passes = 0
        self.dpp = False
        self.sgemm = False
        self.states = 1
        self.wide_store_data = set()
        self.lds_dma = False
        t = text.split(";")[0].strip()
        if t.endswith(":"):
            self.is_label = True
            self.mn, self.kind, self.states = t, "label", 0
            return
        parts = t.split(None, 1)
        mn = parts[0]
        rest = parts[1] if len(parts) > 1 else ""
        self.mn = mn
        ops = split_ops(rest)
        mods = []
        if ops:
            last = ops[-1].split()
            ops[-1] = last[0] if last else ""
            mods = last[1:]
        modstr = " ".join(mods)
        R = [regs_of(o) for o in ops]
        flat = lambda lst: set(x for r in lst for x in r)
        if mn == "s_nop":
            self.kind = "nop"
            self.states = int(ops[0], 0) + 1
        elif mn.startswith("v_mfma"):
            self.kind = "mfma"
            self.dst = set(R[0])
            self.srcA, self.srcB, self.srcC = set(R[1]), set(R[2]), set(R[3])
            self.src = self.srcA | self.srcB | self.srcC
            if "_f32_16x16x4_f32" in mn:
                self.passes, self.sgemm = 8, True
            elif "_f32_32x32x2_f32" in mn:
                self.passes, self.sgemm = 16, True
            elif "16x16x32" in mn or "16x16x16" in mn:
                self.passes = 4
            elif "32x32x16" in mn or "32x32x8" in mn:
                self.passes = 8
            else:
                raise ValueError("unknown mfma " + mn)
        elif mn.startswith("v_"):
            self.kind = "valu"
            base = mn.replace("_e32", "").replace("_e64", "").replace("_dpp", "").replace("_sdwa", "")
            self.dpp = ("_dpp" in mn) or any(m.startswith(("row_", "quad_perm", "wave_")) for m in mods)
            if base.startswith("v_cmp"):
                self.dst = set(R[0])
                self.src = flat(R[1:])
                if base.startswith("v_cmpx"):
                    raise ValueError("v_cmpx unsupported by DSL")
            elif base in ("v_add_co_u32", "v_sub_co_u32", "v_subrev_co_u32"):
                self.dst = set(R[0]) | set(R[1])
                self.src = flat(R[2:])
            elif base in ("v_addc_co_u32", "v_subb_co_u32"):
                self.dst = set(R[0]) | set(R[1])
                self.src = flat(R[2:])
            elif base.startswith("v_permlane") and "swap" in base:
                self.dst = set(R[0]) | set(R[1])
                self.src = set(R[0]) | set(R[1])
                self.kind = "permlane"
            elif base in ("v_readfirstlane_b32", "v_readlane_b32"):
                self.dst = set(R[0])
                self.src = flat(R[1:])
                self.kind = "readlane"
            else:
                self.dst = set(R[0])
                self.src = flat(R[1:])
                if base.startswith(("v_fmac", "v_dot2c", "v_mac", "v_pk_fmac")) or self.dpp:
                    self.src |= self.dst
                if base == "v_cndmask_b32" and len(ops) == 3:
                    self.src.add(("vcc", 0))
            if base in TRANS:
                self.kind = "trans"
            if base.startswith("v_dot"):
                self.kind = "dot"
                if base.startswith("v_dot2c"):
                    self.srcA, self.srcB, self.srcC = set(R[1]), set(R[2]), set(R[0])
                else:
                    self.srcA, self.srcB, self.srcC = set(R[1]), set(R[2]), set(R[3])
            self.mn = base
        elif mn.startswith("ds_"):
            self.kind = "ds"
            if mn.startswith(("ds_read", "ds_bpermute", "ds_permute", "ds_swizzle")) or "_rtn_" in mn:
                self.dst = set(R[0])
                self.src = flat(R[1:])
            else:
                self.src = flat(R)
        elif mn.startswith(("buffer_", "global_")):
            self.kind = "vmem"
            islds = "lds" in mods or "_lds_" in mn
            if "load" in mn and not islds:
                self.dst = set(R[0])
                self.src = flat(R[1:])
            elif "atomic" in mn and "sc0" in mods:
                self.dst = set(R[0])
                self.src = flat(R)
            else:
                self.src = flat(R)
                if islds:
                    self.lds_dma = True
                    self.src.add(("m0", 0))
                if "store" in mn and ("x4" in mn or "x3" in mn):
                    d = R[0] if mn.startswith("buffer_") else R[1]
                    self.wide_store_data = set(d)
        elif mn.startswith("s_"):
            self.kind = "salu"
            if mn.startswith(("s_cmp", "s_cbranch", "s_branch", "s_waitcnt", "s_barrier", "s_endpgm", "s_setprio",
                              "s_sleep", "s_bitcmp")):
                self.src = flat(R)
            elif mn.startswith("s_load") or mn.startswith("s_buffer_load") or mn.startswith("s_memtime") \
                    or mn.startswith("s_memrealtime"):
                self.kind = "smem"
                self.dst = set(R[0])
                self.src = flat(R[1:])
            else:
                self.dst = set(R[0])
                self.src = flat(R[1:])
                if "saveexec" in mn:
                    self.dst.add(("exec", 0))
        else:
            raise ValueError("cannot parse: " + text)

    def is_valu_like(self):
        return self.kind in ("valu", "trans", "dot", "permlane", "readlane")


def need(p, c):
    n = 0
    pv = p.is_valu_like()
    cv = c.is_valu_like()
    vregs = lambda s: set(x for x in s if x[0] in "va")
    sregs = lambda s: set(x for x in s if x[0] in ("s", "vcc"))
    if pv:
        wv = vregs(p.dst)
        ws = sregs(p.dst)
        if c.kind == "mfma" and (wv & c.src):
            n = max(n, 2)
        if p.kind == "trans" and cv and c.kind != "trans" and (wv & c.src):
            n = max(n, 1)
        if p.kind == "trans" and c.kind == "trans" and (wv & c.src):
            n = max(n, 1)
        if ws:
            if cv and (ws & c.src):
                n = max(n, 4 if c.kind == "readlane" else 2)
            if c.kind == "vmem" and (ws & c.src):
                n = max(n, 5)
        if c.kind == "readlane" and (wv & c.src):
            n = max(n, 1)
        if c.dpp and (wv & c.src):
            n = max(n, 2)
        if p.mn.startswith("v_fma_mix") and ((wv & c.src) or (wv & c.dst)):
            n = max(n, 1)
        if c.kind == "permlane" and (wv & c.src):
            n = max(n, 2)
        if p.kind == "dot":
            if c.kind == "dot" and c.mn == p.mn:
                if wv & (c.srcA | c.srcB):
                    n = max(n, 3)
            elif (wv & c.src) or (wv & c.dst):
                n = max(n, 3)
    if p.kind == "mfma":
        D = p.dst
        if p.sgemm:
            far = {8: 10, 16: 18}[p.passes]
            part = {8: 8, 16: 16}[p.passes]
        else:
            far = {4: 8, 8: 12}[p.passes]
            part = {4: 6, 8: 10}[p.passes]
        if c.kind == "mfma":
            if D & (c.srcA | c.srcB):
                n = max(n, far)
            if D & c.srcC:
                if not (D == c.srcC and c.mn == p.mn):
                    n = max(n, part)
            elif D & c.dst:
                n = max(n, far)
        else:
            if (D & c.src) or (D & c.dst):
                n = max(n, far)
        if not p.sgemm and cv and (p.srcC & c.dst):
            n = max(n, {4: 3, 8: 7}[p.passes])
    if p.kind == "salu" and ("m0", 0) in p.dst and c.lds_dma:
        n = max(n, 1)
    if p.wide_store_data and (p.wide_store_data & c.dst):
        n = max(n, 2)
    return n


class Emitter:
    MAXD = 20

    def __init__(self):
        self.out = []
        self.hist = []
        self.loops = {}

    def raw(self, text):
        self.out.append(text)

    def _required(self, hist, c, extra=0):
        dist = extra
        req = 0
        for p in reversed(hist):
            if dist > self.MAXD:
                break
            if not p.is_label:
                nd = need(p, c)
                if nd > dist:
                    req = max(req, nd - dist)
            dist += p.states
        return req

    def _nop(self, n):
        while n > 0:
            k = min(n, 16)
            i = Ins("s_nop %d" % (k - 1))
            self.out.append(i)
            self.hist.append(i)
            n -= k

    def __call__(self, text):
        for line in text.strip().split("\n"):
            line = line.strip()
            if not line or line.startswith(";"):
                if line:
                    self.out.append("    " + line)
                continue
            c = Ins(line)
            if not c.is_label:
                r = self._required(self.hist, c)
                if r:
                    self._nop(r)
            self.out.append(c)
            self.hist.append(c)
            if len(self.hist) > 64:
                self.hist = self.hist[-40:]

    def label(self, name):
        self(name + ":")

    def loop_begin(self, name):
        self.label(name)
        self.loops[name] = len(self.out)

    def loop_end(self, branch_text, name):
        start = self.loops[name]
        body = [i for i in self.out[start:] if isinstance(i, Ins) and not i.is_label]
        req = 0
        dist_extra = 1
        sim = list(self.hist)
        for c in body[:24]:
            r = self._required(sim, c, extra=dist_extra)
            req = max(req, r)
            dist_extra += c.states
            if dist_extra > self.MAXD:
                break
        if req:
            self._nop(req)
        self(branch_text)

    def settle(self, n=12):
        dist = 0
        req = 0
        for p in reversed(self.hist):
            if dist > self.MAXD:
                break
            w = 0
            if p.kind == "mfma":
                w = ({8: 10, 16: 18} if p.sgemm else {4: 8, 8: 12})[p.passes]
            elif p.is_valu_like():
                w = 5 if any(x[0] in ("s", "vcc") for x in p.dst) else 3
            elif p.wide_store_data:
                w = 2
            elif p.kind == "salu":
                w = 1
            req = max(req, w - dist)
            dist += p.states
        if req > 0:
            self._nop(req)

    def reset_hist(self):
        self.hist = []

    def text(self):
        lines = []
        for o in self.out:
            if isinstance(o, Ins):
                lines.append(o.text if o.is_label else "    " + o.text)
            else:
                lines.append(o)
        return "\n".join(lines) + "\n"


def v(n, cnt=1):
    return "v%d" % n if cnt == 1 else "v[%d:%d]" % (n, n + cnt - 1)


def a(n, cnt=1):
    return "a%d" % n if cnt == 1 else "a[%d:%d]" % (n, n + cnt - 1)


def s(n, cnt=1):
    return "s%d" % n if cnt == 1 else "s[%d:%d]" % (n, n + cnt - 1)
```

```python
import os
import struct
import sys

sys.path.insert(0, os.path.dirname(os.path.abspath(__file__)))
from asmdsl import Emitter

NAME = "interleave_layers__sliding_local_dilated__ssm_conv_s4__prompt"
MB = 1 << 20
WS_O = [0, 2 * MB]
WS_XQ = [4 * MB, 6 * MB]
WS_X2 = 8 * MB
WS_ST = [10 * MB, 10 * MB + 65536]
WS_KT = 11 * MB
WS_RANGE = 32 * MB
WS_DBG = 64 * MB
KCOPY, KCH, KQ = 4160, 16640, 66560

L_RING, RSLOT = 81920, 24576
L_VX = 81920
L_OT = 81920
L_WOA = 98304
L_MISC = 155648
L_STQ = L_MISC
L_STV = L_MISC + 640
L_CNT = L_MISC + 1280
L_SP = L_MISC + 1536
TAPCH = 2624
L_PART = L_RING + 2 * RSLOT
L_SCR, SCRCH = 114688, 2112
L_KT = 0
L_U, USTR, UPAD = 66560, 4608, 512
L_Y = 84992
LDS_BYTES = 163840

STAMPS = os.environ.get("STAMPS", "0") == "1"
STOP = os.environ.get("STOP", "")
SPIN = 1 << 17
X = set(os.environ.get("X", "").split(","))


def f2u(x):
    return struct.unpack("<I", struct.pack("<f", x))[0]


def hx(x):
    return "0x%08x" % (x & 0xFFFFFFFF)


LOG2E = 1.4426950408889634
LOG2E_HI = struct.unpack("<f", struct.pack("<f", LOG2E))[0]
LOG2E_LO = LOG2E - LOG2E_HI
LN2 = 0.6931471805599453
INV2PI = 0.15915494309189535

S_WS, S_X, S_W, S_WO, S_OUT, S_DBG = 4, 8, 12, 16, 20, 24
sW, sWQ, sRB, sHG, sQ, sTY, sLAY = "s28", "s29", "s30", "s31", "s32", "s33", "s34"
sO, sXQ, sST = "s35", "s36", "s37"
sD0, sD1, sD2, sD3 = "s56", "s57", "s58", "s59"


def srd(e, d, lo, hi, nbytes):
    e(f"s_mov_b32 s{d}, s{lo}")
    e(f"s_mov_b32 s{d+1}, s{hi}")
    e(f"s_mov_b32 s{d+2}, {hx(nbytes)}")
    e(f"s_mov_b32 s{d+3}, 0x00020000")


def R(base, n=4):
    return f"v[{base}:{base+n-1}]"


def SR(base, n=4):
    return f"s[{base}:{base+n-1}]"


class Stamper:
    def __init__(self, e):
        self.e, self.slot, self.pend = e, 0, []

    def stamp(self, idx):
        if not STAMPS:
            return
        if len(self.pend) >= 15:
            self.flush()
        r = 70 + 2 * len(self.pend)
        self.e(f"s_memtime s[{r}:{r+1}]")
        self.pend.append((r, idx))

    def flush(self, add_layer=0):
        if not STAMPS or not self.pend:
            return
        self.e("s_waitcnt lgkmcnt(0)")
        for r, idx in self.pend:
            if isinstance(idx, tuple):
                self.e(f"s_mul_i32 s100, {sLAY}, {idx[1]}")
                self.e(f"s_add_u32 m0, s100, {idx[0]}")
                self.e(f"v_writelane_b32 v255, s{r}, m0")
            else:
                self.e(f"v_writelane_b32 v255, s{r}, {idx}")
        self.pend = []

    def dump(self):
        if not STAMPS:
            return
        e = self.e
        self.flush()
        e("s_waitcnt vmcnt(0)")
        e("s_memtime s[70:71]")
        e("s_memrealtime s[72:73]")
        e("s_waitcnt lgkmcnt(0)")
        e("v_writelane_b32 v255, s70, 62")
        e("v_writelane_b32 v255, s72, 63")
        e(f"s_add_u32 s72, s{S_WS}, {hx(WS_DBG)}")
        e(f"s_addc_u32 s73, s{S_WS+1}, 0")
        e("s_mov_b32 s74, 0x100000")
        e("s_mov_b32 s75, 0x00020000")
        e("s_lshl_b32 s76, s2, 3")
        e(f"s_add_u32 s76, s76, {sW}")
        e("s_lshl_b32 s76, s76, 8")
        e("v_lshlrev_b32 v2, 2, v1")
        e("buffer_store_dword v255, v2, s[72:75], s76 offen")


class Cnt:
    def __init__(self, e, name, mx):
        self.e, self.name, self.mx = e, name, mx
        self.n, self.done, self.tags = 0, 0, {}

    def op(self, text, tag=None):
        self.e(text)
        self.n += 1
        if tag is not None:
            self.tags[tag] = self.n

    def need(self, *tags):
        k = max([self.tags[t] for t in tags if t in self.tags] + [0])
        if k > self.done:
            left = self.n - k
            self.e(f"s_waitcnt {self.name}({min(left, self.mx)})")
            self.done = k if left <= self.mx else self.n - self.mx

    def all(self):
        if self.done < self.n:
            self.e(f"s_waitcnt {self.name}(0)")
        self.done = self.n

    def reset(self):
        self.n = self.done = 0
        self.tags = {}


def run(e, ops):
    for op in ops:
        op() if callable(op) else e(op)


def weave(e, main, side):
    side = list(side)
    n = len(main)
    for i, m in enumerate(main):
        m() if callable(m) else e(m)
        take = -(-len(side) // (n - i))
        for _ in range(take):
            op = side.pop(0)
            op() if callable(op) else e(op)
    run(e, side)


def gswap(regs, tmps, op):
    out = []
    for sw in ("v_permlane16_swap_b32", "v_permlane32_swap_b32"):
        out += [f"v_mov_b32 {t}, {r}" for r, t in zip(regs, tmps)]
        out += [f"{sw} {r}, {t}" for r, t in zip(regs, tmps)]
        out += [f"{op} {r}, {r}, {t}" for r, t in zip(regs, tmps)]
    return out


def kgen(KP, KT, lg, vm):
    ACC = KP
    pa, pb, pwr, pwi, x0, x1, x2, xc, amax, lw = [f"v{KP+12+j}" for j in range(10)]
    T = lambda j: f"v{KT+j}"
    bc = lambda m: f"row_newbcast:{m} row_mask:0xf bank_mask:0xf"
    P0, P1 = [], []
    P0 += [f"v_and_b32 {T(8)}, 15, v1",
           f"v_lshlrev_b32 {T(9)}, 3, {T(8)}", f"v_cvt_f32_u32 {xc}, {T(9)}",
           f"v_lshlrev_b32 {T(9)}, 7, {T(8)}", f"v_add_u32 {T(9)}, 1024, {T(9)}", f"v_cvt_f32_u32 {x2}, {T(9)}",
           f"v_lshrrev_b32 {T(9)}, 3, {T(8)}", f"v_and_b32 {T(10)}, 7, {T(8)}",
           f"v_lshl_add_u32 {T(9)}, {T(9)}, 7, {T(10)}", f"v_cvt_f32_u32 {x0}, {T(9)}",
           f"v_lshrrev_b32 {T(9)}, 2, {T(8)}", f"v_and_b32 {T(10)}, 3, {T(8)}",
           f"v_lshl_add_u32 {T(9)}, {T(9)}, 6, {T(10)}", f"v_add_u32 {T(9)}, 128, {T(9)}",
           f"v_bfe_u32 {T(10)}, {T(8)}, 1, 2", f"v_and_b32 {T(11)}, 1, {T(8)}",
           f"v_lshl_add_u32 {T(10)}, {T(10)}, 5, {T(11)}", f"v_add_u32 {T(10)}, 128, {T(10)}",
           f"v_lshlrev_b32 {T(10)}, 1, {T(10)}",
           f"v_cmp_gt_u32 s[44:45], 8, {T(8)}",
           f"v_cndmask_b32 {T(9)}, {T(10)}, {T(9)}, s[44:45]",
           f"v_cvt_f32_u32 {x1}, {T(9)}", f"v_add_f32 {x1}, {x1}, {x1}"]
    dt, t0, t1, t2 = T(8), T(9), T(10), T(11)
    P1 += ["s_waitcnt lgkmcnt(0)",
           f"s_lshr_b32 s44, {sW}, 2", "s_lshl_b32 s44, s44, 4", "s_lshr_b32 s44, s68, s44", "s_lshl_b32 s44, s44, 16",
           f"v_mov_b32 {t0}, s44",
           f"v_mul_f32 {dt}, {hx(f2u(LOG2E_HI))}, {t0}",
           f"v_mov_b32 {t2}, {hx(f2u(LOG2E_HI))}",
           f"v_fma_f32 {t1}, {t0}, {t2}, -{dt}",
           f"v_mov_b32 {t2}, {hx(f2u(LOG2E_LO))}",
           f"v_fma_f32 {t1}, {t0}, {t2}, {t1}",
           f"v_exp_f32 {dt}, {dt}",
           f"v_mul_f32 {t1}, {hx(f2u(LN2))}, {t1}",
           f"v_fma_f32 {dt}, {dt}, {t1}, {dt}",
           f"v_cvt_pk_bf16_f32 {dt}, {dt}, {dt}",
           f"v_lshlrev_b32 {dt}, 16, {dt}",
           lambda: vm.need("prm")]
    P1 += [f"v_mul_f32 {T(j)}, {dt}, {T(j)}" for j in range(4)]
    P1 += [f"v_mul_f32 {pa}, {hx(f2u(LOG2E_HI))}, {T(0)}", f"v_mul_f32 {pb}, {hx(f2u(INV2PI))}, {T(1)}",
           f"v_mul_f32 {pwr}, {T(4)}, {T(2)}", f"v_mul_f32 {pwi}, {T(4)}, {T(3)}",
           f"v_fma_f32 {pwr}, -{T(5)}, {T(3)}, {pwr}", f"v_fma_f32 {pwi}, {T(5)}, {T(2)}, {pwi}",
           f"v_mov_b32 {lw}, {hx(f2u(1e-37))}", f"v_mov_b32 {amax}, {pa}",
           f"v_max3_f32 {lw}, abs({pwr}), abs({pwi}), {lw}"]
    for r in (1, 2, 4):
        P1 += [f"v_max_f32_dpp {q}, {q}, {q} row_ror:{r} row_mask:0xf bank_mask:0xf" for q in (amax, lw)]
    P1 += gswap([amax, lw], [t0, t1], "v_max_f32")
    P1 += [f"v_frexp_exp_i32_f32 {t0}, {lw}", f"v_sub_f32 {pa}, {pa}, {amax}", f"v_sub_u32 {t1}, 0, {t0}",
           f"v_cvt_f32_i32 {lw}, {t0}", f"v_ldexp_f32 {pwr}, {pwr}, {t1}", f"v_ldexp_f32 {pwi}, {pwi}, {t1}"]

    MG, SN, CS, WR, WI, PKB, PKA = 0, 4, 8, 12, 16, 20, 24

    def polar(ks, x):
        out = []
        for e_ in range(4):
            out += [f"v_mul_f32_dpp {T(MG+e_)}, {pa}, {x} {bc(4*ks+e_)}", f"v_mul_f32_dpp {T(CS+e_)}, {pb}, {x} {bc(4*ks+e_)}"]
        for e_ in range(4):
            out += [f"v_exp_f32 {T(MG+e_)}, {T(MG+e_)}", f"v_fract_f32 {T(CS+e_)}, {T(CS+e_)}"]
        for e_ in range(4):
            out += [f"v_sin_f32 {T(SN+e_)}, {T(CS+e_)}", f"v_cos_f32 {T(CS+e_)}, {T(CS+e_)}"]
        return out

    def kstep(ks):
        B = polar(ks, xc)
        for e_ in range(4):
            B += [f"v_mul_f32_dpp {T(WR+e_)}, {pwr}, {T(MG+e_)} {bc(4*ks+e_)}",
                  f"v_mul_f32_dpp {T(WI+e_)}, {pwi}, {T(MG+e_)} {bc(4*ks+e_)}"]
        for e_ in range(4):
            B += [f"v_mul_f32 {T(MG+e_)}, {T(WI+e_)}, {T(SN+e_)}", f"v_mul_f32 {T(WI+e_)}, {T(WI+e_)}, {T(CS+e_)}"]
        B += [f"v_fma_mixlo_f16 {T(PKB+e_)}, {T(WR+e_)}, {T(CS+e_)}, -{T(MG+e_)}" for e_ in range(4)]
        B += [f"v_fma_mixhi_f16 {T(PKB+e_)}, -{T(WR+e_)}, {T(SN+e_)}, -{T(WI+e_)}" for e_ in range(4)]
        parts = [B]
        for j, x in enumerate((x0, x1, x2)):
            pk = PKA + 4 * (j & 1)
            A = polar(ks, x)
            A += [f"v_fma_mixlo_f16 {T(pk+e_)}, {T(MG+e_)}, {T(CS+e_)}, 0" for e_ in range(4)]
            A += [f"v_fma_mixhi_f16 {T(pk+e_)}, {T(MG+e_)}, {T(SN+e_)}, 0" for e_ in range(4)]
            A += [f"v_mfma_f32_16x16x32_f16 {R(ACC+4*j)}, {R(KT+pk)}, {R(KT+PKB)}, {'0' if ks == 0 else R(ACC+4*j)}"]
            parts.append(A)
        return parts
    K0 = sum(kstep(0), [])
    K1 = kstep(1)
    g = T(12)
    U = [f"v_lshrrev_b32 {g}, 4, v1", f"v_and_b32 {T(13)}, 15, v1",
         f"v_lshrrev_b32 {T(14)}, 5, v1", f"v_and_b32 {T(15)}, 1, {g}",
         f"v_lshl_add_u32 {T(14)}, {T(14)}, 5, {T(15)}", f"v_lshlrev_b32 {T(14)}, 2, {T(14)}",
         f"v_lshl_add_u32 {T(14)}, {T(13)}, 3, {T(14)}",
         f"s_mul_i32 s46, {sW}, {TAPCH}", f"s_add_u32 s46, s46, {L_PART}",
         f"v_cvt_f32_u32 {T(0)}, {T(14)}", f"v_lshl_add_u32 {x0}, {T(14)}, 2, s46",
         f"v_lshlrev_b32 {T(14)}, 7, {g}", f"v_add_u32 {T(14)}, 256, {T(14)}", f"v_lshlrev_b32 {T(15)}, 8, {g}",
         f"v_max_u32 {T(14)}, {T(14)}, {T(15)}", f"v_cvt_f32_u32 {T(4)}, {T(14)}", f"v_add_f32 {T(4)}, {T(4)}, {xc}",
         f"v_lshlrev_b32 {T(14)}, 9, {g}", f"v_add_u32 {T(14)}, 1024, {T(14)}", f"v_cvt_f32_u32 {T(8)}, {T(14)}",
         f"v_add_f32 {T(8)}, {T(8)}, {xc}",
         f"v_cmp_gt_u32 s[44:45], 32, v1", "s_mov_b32 s47, 0x43000000",
         f"v_mov_b32 {T(16)}, 4.0", f"v_mov_b32 {T(17)}, s47",
         f"v_cndmask_b32 {T(17)}, {T(17)}, {T(16)}, s[44:45]", f"v_cndmask_b32 {T(16)}, {T(16)}, 2.0, s[44:45]",
         f"v_add_u32 {x2}, s46, {T(15)}", f"v_lshlrev_b32 {T(14)}, 3, {T(13)}", f"v_lshlrev_b32 {T(18)}, 4, {T(13)}",
         f"v_cndmask_b32 {T(14)}, {T(14)}, {T(18)}, s[44:45]", f"v_add_u32 {x1}, {x2}, {T(14)}",
         f"v_mov_b32 {T(18)}, 128", f"v_cndmask_b32 {T(18)}, {T(18)}, 8, s[44:45]", f"v_add_u32 {pb}, {x1}, {T(18)}",
         f"v_lshl_add_u32 {x2}, {T(13)}, 2, {x2}",
         f"v_mul_f32 {T(18)}, s47, {amax}"]
    U += [f"v_fma_f32 {T(4*j)}, {T(4*j)}, {amax}, {lw}" for j in range(3)]
    U += [f"v_add_f32 {T(1)}, {T(0)}, {amax}", f"v_fma_f32 {T(2)}, 2.0, {amax}, {T(0)}",
          f"v_fma_f32 {T(5)}, {T(16)}, {amax}, {T(4)}", f"v_fma_f32 {T(6)}, {T(17)}, {amax}, {T(4)}",
          f"v_add_f32 {T(9)}, {T(8)}, {T(18)}", f"v_fma_f32 {T(10)}, 2.0, {T(18)}, {T(8)}",
          f"v_add_f32 {T(3)}, {T(2)}, {amax}", f"v_fma_f32 {T(7)}, {T(16)}, {amax}, {T(6)}",
          f"v_add_f32 {T(11)}, {T(10)}, {T(18)}"]
    h = len(U)
    U += [f"v_exp_f32 {T(j)}, {T(j)}" for j in range(12)]
    U += [f"v_mul_f32 v{ACC+j}, v{ACC+j}, {T(j)}" for j in range(12)]

    def WRT():
        lg.op(f"ds_write_b128 {x0}, {R(ACC)}")
        lg.op(f"ds_write_b64 {x1}, v[{ACC+4}:{ACC+5}] offset:1024")
        lg.op(f"ds_write_b64 {pb}, v[{ACC+6}:{ACC+7}] offset:1024")
        lg.e("s_mov_b32 exec_hi, 1")
        lg.op(f"ds_write_b32 {x2}, v{ACC+8} offset:2048")
        lg.e("s_mov_b32 exec_hi, 0")
        for e_ in range(1, 4):
            lg.op(f"ds_write_b32 {x2}, v{ACC+8+e_} offset:{2048+64*e_}")
        lg.e("s_mov_b32 exec_hi, -1")
    return P0, P1, K0, K1, [U[:h], U[h:]], WRT


MF = "v_mfma_f32_16x16x32_bf16"


def flag_test(e, vt, mask):
    e("s_mov_b32 s39, 0x01010101")
    e(f"v_cmp_ne_u32 vcc, s39, v{vt}")
    if mask:
        e(f"s_and_b64 vcc, vcc, {mask}")


def check_flags(e, lab, vt, mask):
    flag_test(e, vt, mask)
    e(f"s_cbranch_vccz {lab}_x")
    e("s_mov_b32 s38, 0")
    e(f"v_lshlrev_b32 v{vt+1}, 2, v1")
    e.loop_begin(lab)
    e("s_sleep 4")
    e(f"buffer_load_dword v{vt}, v{vt+1}, {SR(S_DBG)}, 0 offen sc1")
    e("s_add_u32 s38, s38, 1")
    e("s_waitcnt vmcnt(0)")
    flag_test(e, vt, mask)
    e(f"s_cmp_gt_u32 s38, {SPIN}")
    e(f"s_cbranch_scc1 {lab}_x")
    e.loop_end(f"s_cbranch_vccnz {lab}", lab)
    e.settle()
    e.label(lab + "_x")


def sentinel_check(e, regs, tmp):
    regs = list(regs)
    cur = regs.pop(0)
    while regs:
        if len(regs) >= 2:
            e(f"v_max3_u32 v{tmp}, v{cur}, v{regs[0]}, v{regs[1]}")
            regs = regs[2:]
        else:
            e(f"v_max_u32 v{tmp}, v{cur}, v{regs.pop(0)}")
        cur = tmp
    e(f"v_cmp_eq_u32 vcc, -1, v{cur}")


def poll_loop(e, lab, loads, regs, tmp, first_extra=None):
    e("s_mov_b32 s38, 0")
    e.loop_begin(lab)
    for ld in loads:
        e(ld)
    if first_extra:
        first_extra()
    e("s_add_u32 s38, s38, 1")
    e("s_waitcnt vmcnt(0)")
    sentinel_check(e, regs, tmp)
    e(f"s_cmp_gt_u32 s38, {SPIN}")
    e(f"s_cbranch_scc1 {lab}_x")
    e.loop_end(f"s_cbranch_vccnz {lab}", lab)
    e.label(lab + "_x")


def prologue(e, tm):
    e("s_cmp_ge_u32 s2, 256")
    e("s_cbranch_scc1 k_exit")
    if STAMPS:
        e("s_memrealtime s[98:99]")
    tm.stamp(0)
    e("s_load_dwordx4 s[60:63], s[0:1], 0")
    e("s_load_dwordx2 s[64:65], s[0:1], 16")
    e("s_load_dwordx16 s[40:55], s[0:1], 32")
    e("s_load_dwordx4 s[56:59], s[0:1], 96")
    e("s_load_dwordx2 s[66:67], s[0:1], 112")
    e("v_lshrrev_b32 v2, 6, v0")
    e("v_and_b32 v1, 63, v0")
    e("v_lshlrev_b32 v3, 4, v0")
    e(f"v_readfirstlane_b32 {sW}, v2")
    e("v_lshlrev_b32 v0, 4, v1")
    e("s_and_b32 s38, s2, 7")
    e("s_lshr_b32 s39, s2, 3")
    e(f"s_lshl_b32 {sRB}, s38, 2")
    e(f"s_lshr_b32 {sHG}, s39, 3")
    e(f"s_add_u32 {sRB}, {sRB}, {sHG}")
    e(f"s_and_b32 {sHG}, s39, 7")
    e(f"s_lshl_b32 {sQ}, s38, 4")
    e(f"s_lshr_b32 {sTY}, s39, 1")
    e(f"s_add_u32 {sQ}, {sQ}, {sTY}")
    e(f"s_and_b32 {sTY}, s39, 1")
    e(f"s_and_b32 {sWQ}, {sW}, 3")
    e(f"s_mov_b32 {sLAY}, 0")
    e(f"s_mov_b32 {sO}, {WS_O[0]}")
    e(f"s_mov_b32 {sXQ}, {WS_XQ[0]}")
    e(f"s_mov_b32 {sST}, {WS_ST[0]}")
    if STAMPS:
        e("v_mov_b32 v255, 0")
    for r in range(4, 8):
        e(f"v_mov_b32 v{r}, 0")
    e(f"v_add_u32 v3, {L_MISC}, v3")
    e("ds_write_b128 v3, v[4:7]")
    for r in range(4, 8):
        e(f"v_mov_b32 v{r}, 0x3f803f80")
    e("v_lshrrev_b32 v3, 3, v1")
    e("v_lshlrev_b32 v3, 11, v3")
    e("v_and_b32 v8, 7, v1")
    e("v_lshl_add_u32 v3, v8, 4, v3")
    e("ds_write_b128 v3, v[4:7]")
    e(f"s_lshl_b32 s38, {sQ}, 1")
    e(f"s_add_u32 s38, s38, {sTY}")
    e("s_lshl_b32 s69, s38, 2")
    e("s_lshl_b32 s38, s38, 1")
    e(f"s_lshr_b32 s39, {sW}, 2")
    e("s_add_u32 s38, s38, s39")
    e("s_lshl_b32 s38, s38, 8")
    e(f"s_lshl_b32 s39, {sWQ}, 6")
    e("s_add_u32 s38, s38, s39")
    e("v_lshrrev_b32 v2, 4, v1")
    e("v_lshl_add_u32 v7, v8, 1, s38")
    e("v_lshl_add_u32 v7, v2, 4, v7")
    e(f"s_and_b32 s39, {sW}, 1")
    e("s_lshl_b32 s38, s39, 2")
    e("v_xor_b32 v5, v8, v2")
    e("v_xor_b32 v5, s38, v5")
    e("v_lshlrev_b32 v5, 4, v5")
    e(f"s_lshl_b32 s38, {sRB}, 3")
    e("s_add_u32 s38, s38, s39")
    e("s_lshl_b32 s38, s38, 3")
    e("v_lshrrev_b32 v6, 3, v1")
    e("v_add_u32 v6, s38, v6")
    e("v_lshl_add_u32 v5, v6, 10, v5")
    e("v_subrev_u32 v6, 16384, v5")
    e("v_lshrrev_b32 v9, 5, v1")
    e("v_bfe_u32 v8, v1, 3, 2")
    e("v_lshl_add_u32 v4, v9, 3, v8")
    e(f"s_lshr_b32 s39, {sWQ}, 1")
    e("s_lshl_b32 s38, s39, 4")
    e(f"s_and_b32 s39, {sWQ}, 1")
    e("s_lshl_b32 s39, s39, 2")
    e("s_add_u32 s38, s38, s39")
    e("v_add_u32 v4, s38, v4")
    e("v_mul_u32_u24 v4, 3072, v4")
    e("v_bfe_u32 v8, v1, 1, 2")
    e("v_xor_b32 v8, v8, v2")
    e("v_lshl_add_u32 v4, v8, 5, v4")
    e("v_and_b32 v8, 1, v1")
    e("v_lshl_add_u32 v4, v8, 4, v4")
    e(f"s_lshl_b32 s38, {sHG}, 7")
    e("v_add_u32 v4, s38, v4")
    e(f"s_lshr_b32 s3, {sW}, 1")
    e("s_lshl_b32 s3, s3, 7")
    e("s_waitcnt lgkmcnt(0)")


def prologue_loads(e, vm, KT, kk, CLR):
    for a in range(6):
        e(f"v_mov_b32 v{KT+a}, 0")
    for a in range(6):
        vm.op(f"global_load_short_d16_hi v{KT+a}, v7, s[{40+2*a}:{41+2*a}]", "prm")
    e("s_load_dword s68, s[52:53], s69")
    srd(e, S_W, 62, 63, 512 * 1536 * 2)
    srd(e, S_X, 60, 61, 2 * MB)
    e(f"s_mul_i32 s69, {sWQ}, 3072")
    e(f"s_add_u32 s69, s69, {L_RING}")

    def xs(j, T, tag):
        e(f"s_lshl_b32 m0, {sW}, 10")
        e(f"s_add_u32 m0, m0, {8192*j + 16384*T}")
        e(f"s_add_u32 s38, s3, {512*j + 16384*max(T-1, 0)}")
        if T == 0:
            e(f"s_bitcmp1_b32 {sW}, 0")
            e("s_cselect_b32 exec_lo, -1, 0xffffff00")
        vm.op(f"buffer_load_dwordx4 {'v5' if T else 'v6'}, {SR(S_X)}, s38 offen lds", tag)
        if T == 0:
            e("s_mov_b32 exec_lo, -1")
    run(e, w_issue(e, vm, 0, (kk,)))
    for T in range(5):
        xs(0, T, "xA")
    srd(e, S_WS, 66, 67, WS_RANGE)
    srd(e, S_WO, 64, 65, 512 * 512 * 2)
    srd(e, S_OUT, 56, 57, 2 * MB)
    srd(e, S_DBG, 58, 59, 256)
    e(f"s_lshl_b32 s38, {sQ}, 3")
    e("s_load_dwordx2 s[66:67], s[54:55], s38")
    rest = [] if "noclr1" in X else clear_set(e, vm, 0, CLR, sW, 1)
    rest += w_issue(e, vm, 1, (kk,)) + w_issue(e, vm, 2, (kk,))
    rest += [lambda T=T: xs(1, T, "xB") for T in range(5)]
    return rest


def o_piece_off(e, dst, pr, head_s, ws_off):
    e(f"s_lshl_b32 {dst}, {sHG}, 2")
    e(f"s_add_u32 {dst}, {dst}, {head_s}")
    e(f"s_lshl_b32 {dst}, {dst}, 10")
    e(f"s_lshl_b32 s41, {sRB}, 16")
    e(f"s_add_u32 {dst}, {dst}, s41")
    if isinstance(pr, str):
        e(f"s_lshl_b32 s41, {pr}, 15")
        e(f"s_add_u32 {dst}, {dst}, s41")
    e(f"s_add_u32 {dst}, {dst}, {ws_off}")


def xq_base(e, dst, ws_off):
    e(f"s_and_b32 {dst}, {sHG}, 3")
    e(f"s_lshl_b32 {dst}, {dst}, 19")
    e(f"s_lshl_b32 s41, {sRB}, 9")
    e(f"s_add_u32 {dst}, {dst}, s41")
    e(f"s_lshr_b32 s41, {sHG}, 2")
    e("s_lshl_b32 s41, s41, 8")
    e(f"s_add_u32 {dst}, {dst}, s41")
    e(f"s_add_u32 {dst}, {dst}, {ws_off}")


def st_base(e, dst, ws_off):
    e(f"s_and_b32 {dst}, {sHG}, 3")
    e(f"s_lshl_b32 {dst}, {dst}, 14")
    e(f"s_lshl_b32 s41, {sRB}, 9")
    e(f"s_add_u32 {dst}, {dst}, s41")
    e(f"s_lshr_b32 s41, {sHG}, 2")
    e("s_lshl_b32 s41, s41, 8")
    e(f"s_add_u32 {dst}, {dst}, s41")
    e(f"s_add_u32 {dst}, {dst}, {ws_off}")


def clear_set(e, vm, lay, vs, widx, per):
    def init():
        for r in range(4):
            e(f"v_mov_b32 v{vs+r}, -1")
        e(f"v_lshrrev_b32 v{vs+4}, 4, v1")
        e(f"v_lshlrev_b32 v{vs+4}, 14, v{vs+4}")
        e(f"v_and_b32 v{vs+5}, 15, v1")
        e(f"v_lshl_add_u32 v{vs+4}, v{vs+5}, 4, v{vs+4}")

    def o_(j):
        e(f"s_add_u32 s40, {widx}, {j}")
        e("s_lshr_b32 s42, s40, 2")
        e("s_and_b32 s43, s40, 3")
        o_piece_off(e, "s39", "s42", "s43", WS_O[lay])
        vm.op(f"buffer_store_dwordx4 {R(vs)}, v0, {SR(S_WS)}, s39 offen sc1")

    def x_(j):
        xq_base(e, "s39", WS_XQ[lay])
        e(f"s_add_u32 s40, {widx}, {j}")
        e("s_lshl_b32 s42, s40, 16")
        e("s_add_u32 s39, s39, s42")
        vm.op(f"buffer_store_dwordx4 {R(vs)}, v{vs+4}, {SR(S_WS)}, s39 offen sc1")

    def s_():
        st_base(e, "s39", WS_ST[lay])
        e(f"s_lshl_b32 s42, {widx}, 5")
        e("s_add_u32 s39, s39, s42")
        e(f"s_mov_b64 exec, {(1 << (2 * per)) - 1}")
        vm.op(f"buffer_store_dwordx4 {R(vs)}, v0, {SR(S_WS)}, s39 offen sc1")
        e("s_mov_b64 exec, -1")
    ops = [init]
    for j in range(per):
        ops += [lambda j=j: o_(j), lambda j=j: x_(j)]
    return ops + [s_]


def w_issue(e, vm, S, kks):
    def one(kk, seg):
        e(f"s_add_u32 m0, s69, {(S % 3) * RSLOT + 12288 * kk}")
        e(f"s_mov_b32 s38, {S * 196608 + 98304 * kk}")
        vm.op(f"buffer_load_dwordx4 v4, {SR(S_W)}, s38 offen offset:{1024*seg} lds", ("W", S))
    return [lambda kk=kk, seg=seg: one(kk, seg) for kk in kks for seg in range(3)]


def vb_addr(e, dst, h):
    e(f"v_lshrrev_b32 {dst}, 5, v1")
    e(f"v_mul_u32_u24 {dst}, 6144, {dst}")
    e("v_bfe_u32 v8, v1, 2, 3")
    e(f"v_lshl_add_u32 {dst}, v8, 7, {dst}")
    e("v_bfe_u32 v8, v1, 3, 2")
    e(f"v_xor_b32 v8, {h}, v8")
    e(f"v_lshl_add_u32 {dst}, v8, 5, {dst}")
    e("v_and_b32 v8, 3, v1")
    e(f"v_lshl_add_u32 {dst}, v8, 3, {dst}")
    e(f"v_add_u32 {dst}, {L_RING}, {dst}")


def xf_addr(e, dst, t0="v8", t1="v9"):
    e(f"v_bfe_u32 {t0}, v1, 1, 3")
    e(f"v_lshrrev_b32 {t1}, 4, v1")
    e(f"v_xor_b32 {t0}, {t0}, {t1}")
    e(f"v_and_b32 {t1}, 15, v1")
    e(f"v_lshlrev_b32 {t1}, 7, {t1}")
    e(f"v_lshl_add_u32 {dst}, {t0}, 4, {t1}")


def ingest(e, lg, vm, S, vb, vb2, segs, wreg):
    need = [("W", S)] + (["xA"] if S == 0 else []) + (["xB"] if S == 4 else [])
    lg.all()
    vm.need(*need)
    e("s_barrier")
    sl = S % 3
    for kk in range(2):
        for n_, seg in enumerate(segs):
            for hi in range(2):
                r = wreg(2 * S + kk, n_) + 2 * hi
                off = kk * 12288 + hi * 3072 + seg * 1024
                b, off = (vb2, off) if sl == 2 else (vb, off + sl * RSLOT)
                lg.op(f"ds_read_b64_tr_b16 v[{r}:{r+1}], {b} offset:{off}", ("w", 2 * S + kk))


P_W, P_CSQ, P_CSK = 120, 248, 116
P_K, P_Q, P_F = 16, 32, 52


def p_wreg(s, n):
    return P_W + 8 * s + 4 * n


def p_gemm(lg, s0, s1, lay1, pre_issued=False, next_s=None):
    def reads(s):
        out = []
        for T in range(5):
            b, off = (("v3", "v11")[s & 1], (s >> 1) * 2048) if T == 4 else (("v2", "v10")[s & 1], T * 16384 + (s >> 1) * 2048)
            out.append(lambda s=s, T=T, b=b, off=off: lg.op(
                f"ds_read_b128 {R(P_F + 20*(s & 1) + 4*T)}, {b} offset:{off}", ("x", s, T)))
        return out
    ops = [] if pre_issued else reads(s0)
    e = lg.e
    for s in range(s0, s1):
        ms = []
        for T in range(5):
            for seg in (1, 0):
                if T == 0 and seg == 0 and not lay1:
                    continue
                c = (P_K + 4 * T) if seg else (P_Q + 4 * T if T else P_CSQ)

                def m(s=s, T=T, seg=seg, c=c):
                    lg.need(("x", s, T), ("w", s))
                    src = "0" if s == 0 else R(c)
                    e(f"{MF} {R(c)}, {R(p_wreg(s, seg))}, {R(P_F + 20*(s & 1) + 4*T)}, {src}")
                ms.append(m)
        nx = s + 1 if s + 1 < s1 else next_s
        side = reads(nx) if nx is not None else []
        for i, m in enumerate(ms):
            ops.append(m)
            if i >= 1 and side:
                ops.append(side.pop(0))
        ops += side
    return ops


def p_setup_att(e):
    e("v_and_b32 v10, 15, v1")
    e("v_lshrrev_b32 v11, 4, v1")
    e("v_and_b32 v8, 1, v10")
    e("v_lshl_add_u32 v9, v11, 2, v8")
    e("v_cmp_eq_u32 s[60:61], 1, v8")
    e("v_cmp_le_u32 s[62:63], v9, v10")
    e("v_add_u32 v9, 2, v9")
    e("v_cmp_le_u32 s[64:65], v9, v10")
    e("v_mov_b32 v8, 0x0c0c0100")
    e("v_mov_b32 v9, 0x01000c0c")
    e("v_mov_b32 v7, 0x0c0c0c0c")
    e("v_cndmask_b32 v8, v8, v9, s[60:61]")
    e("v_cndmask_b32 v12, v8, v7, s[62:63]")
    e("v_cndmask_b32 v14, v7, v8, s[62:63]")
    e("v_mov_b32 v8, 0x0c0c0302")
    e("v_mov_b32 v9, 0x03020c0c")
    e("v_cndmask_b32 v8, v8, v9, s[60:61]")
    e("v_cndmask_b32 v13, v8, v7, s[64:65]")
    e("v_cndmask_b32 v15, v7, v8, s[64:65]")
    e("v_and_b32 v7, 1, v10")
    e("v_lshlrev_b32 v7, 4, v7")
    e("v_lshrrev_b32 v8, 1, v10")
    e("v_add_u32 v7, v7, v8")
    e("v_and_b32 v8, 1, v11")
    e("v_lshl_add_u32 v7, v8, 3, v7")
    e("v_lshlrev_b32 v7, 4, v7")
    e("v_lshrrev_b32 v8, 1, v11")
    e("v_lshl_add_u32 v7, v8, 9, v7")
    e(f"v_lshlrev_b32 v8, 3, v10")
    e(f"v_add_u32 v8, {L_STQ}, v8")
    e(f"s_mul_i32 s38, {sW}, 2560")
    e(f"s_add_u32 s38, s38, {L_VX}")
    e("v_lshl_add_u32 v9, v1, 3, s38")


def p_attention(e, lg, tm):
    QS, QP, S0, VP, OP = 52, 62, 72, 88, 52
    e("v_lshlrev_b32 v115, 2, v1")
    e(f"buffer_load_dword v114, v115, {SR(S_DBG)}, 0 offen sc1")
    for T in range(5):
        lg.op(f"ds_read_b64 v[{QS+2*T}:{QS+2*T+1}], v8 offset:{128*T}", ("s", T))
    for T in range(5):
        lg.op(f"ds_read_b64 v[{VP+2*T}:{VP+2*T+1}], v9 offset:{512*T}", "v")
    e(f"s_cmp_eq_u32 {sRB}, 0")
    e("s_cselect_b64 s[66:67], -1, 0")
    qk = [(T, seg) for T in range(5) for seg in (1, 0) if not (T == 0 and seg == 0)]
    unit = lambda T, seg: (P_K + 4 * T) if seg else (P_Q + 4 * T)
    for T, seg in qk:
        lg.need(("s", T))
        c, cs = unit(T, seg), (P_CSK if seg else P_CSQ)
        for h in range(2):
            e(f"v_pk_fma_f32 v[{c+2*h}:{c+2*h+1}], v[{cs+2*h}:{cs+2*h+1}], v[{QS+2*T}:{QS+2*T+1}], v[{c+2*h}:{c+2*h+1}] op_sel_hi:[1,0,1] neg_lo:[0,1,0] neg_hi:[0,1,0]")
    for T, seg in qk:
        c = unit(T, seg)
        for h in range(2):
            e(f"v_pk_mul_f32 v[{c+2*h}:{c+2*h+1}], v[{c+2*h}:{c+2*h+1}], v[{QS+2*T}:{QS+2*T+1}] op_sel:[0,1] op_sel_hi:[1,1]")
    for T, seg in qk:
        c = unit(T, seg)
        d = QP + 2 * (T - 1) if seg == 0 else c
        e(f"v_cvt_pk_bf16_f32 v{d}, v{c}, v{c+1}")
        e(f"v_cvt_pk_bf16_f32 v{d+1}, v{c+2}, v{c+3}")
    kp = lambda T: f"v[{P_K+4*T}:{P_K+4*T+1}]"
    TS = range(1, 5)
    for T in TS:
        q = f"v[{QP+2*(T-1)}:{QP+2*(T-1)+1}]"
        e(f"v_mfma_f32_16x16x16_bf16 {R(P_Q+4*T)}, {kp(T)}, {q}, 0")
        e(f"v_mfma_f32_16x16x16_bf16 {R(S0+4*(T-1))}, {kp(T-1)}, {q}, 0")
    e(f"v_mov_b32 v10, {hx(f2u(-4.0e9))}")
    e("s_mov_b32 s38, 0xffff0000")
    e(f"s_mov_b32 s39, {hx(f2u(0.25*LOG2E))}")
    W = lambda T: 98 + 4 * (T - 1)
    for T in TS:
        w, c1, c0 = W(T), P_Q + 4 * T, S0 + 4 * (T - 1)
        e(f"v_cndmask_b32 v{w}, v{c1}, v{c1+1}, s[60:61]")
        e(f"v_cndmask_b32 v{w+1}, v{c1+2}, v{c1+3}, s[60:61]")
        e(f"v_cndmask_b32 v{w+2}, v{c0}, v{c0+1}, s[60:61]")
        e(f"v_cndmask_b32 v{w+3}, v{c0+2}, v{c0+3}, s[60:61]")
        if T == 1:
            e(f"v_cndmask_b32 v{w+2}, v{w+2}, v10, s[66:67]")
            e(f"v_cndmask_b32 v{w+3}, v{w+3}, v10, s[66:67]")
    for T in TS:
        w = W(T)
        e(f"v_cndmask_b32 v{w}, v{w+2}, v{w}, s[62:63]")
        e(f"v_cndmask_b32 v{w+1}, v{w+3}, v{w+1}, s[64:65]")
    for T in TS:
        e(f"v_cvt_pk_bf16_f32 v{W(T)+2}, v{W(T)}, v{W(T)+1}")
    for T in TS:
        e(f"v_lshlrev_b32 v{W(T)}, 16, v{W(T)+2}")
        e(f"v_and_b32 v{W(T)+1}, s38, v{W(T)+2}")
    for T in TS:
        e(f"v_max_f32 v{W(T)+2}, v{W(T)}, v{W(T)+1}")
    run(e, gswap([f"v{W(T)+2}" for T in TS], [f"v{W(T)+3}" for T in TS], "v_max_f32"))
    for T in TS:
        w = W(T)
        e(f"v_sub_f32 v{w}, v{w}, v{w+2}")
        e(f"v_sub_f32 v{w+1}, v{w+1}, v{w+2}")
    for T in TS:
        w = W(T)
        e(f"v_mul_f32 v{w}, s39, v{w}")
        e(f"v_mul_f32 v{w+1}, s39, v{w+1}")
    for T in TS:
        w = W(T)
        e(f"v_exp_f32 v{w}, v{w}")
        e(f"v_exp_f32 v{w+1}, v{w+1}")
    for T in TS:
        e(f"v_add_f32 v{W(T)+2}, v{W(T)}, v{W(T)+1}")
    run(e, gswap([f"v{W(T)+2}" for T in TS], [f"v{W(T)+3}" for T in TS], "v_add_f32"))
    for T in TS:
        e(f"v_rcp_f32 v{W(T)+2}, v{W(T)+2}")
    for T in TS:
        w = W(T)
        e(f"v_mul_f32 v{w}, v{w}, v{w+2}")
        e(f"v_mul_f32 v{w+1}, v{w+1}, v{w+2}")
    for T in TS:
        e(f"v_cvt_pk_bf16_f32 v{W(T)+2}, v{W(T)}, v{W(T)+1}")
    o_piece_off(e, "s40", 0, sW, sO)
    for T in TS:
        for k in range(4):
            e(f"v_perm_b32 v{S0+4*(T-1)+k}, v{W(T)+2}, v{W(T)+2}, v{12+k}")
    lg.need("v")
    for T in TS:
        e(f"{MF} {R(P_Q+4*T)}, {R(VP+2*(T-1))}, {R(S0+4*(T-1))}, 0")
    e("s_add_u32 s42, s40, 32768")
    e(f"s_waitcnt vmcnt({NCLR2 + 1})")
    for T in TS:
        o_, c1 = OP + 2 * (T - 1), P_Q + 4 * T
        e(f"v_cvt_pk_bf16_f32 v{o_}, v{c1}, v{c1+1}")
        e(f"v_cvt_pk_bf16_f32 v{o_+1}, v{c1+2}, v{c1+3}")
    for pr in range(2):
        o_ = OP + 4 * pr
        e(f"v_permlane16_swap_b32 v{o_}, v{o_+2}")
        e(f"v_permlane16_swap_b32 v{o_+1}, v{o_+3}")
        e(f"v_min_u32 v{o_+3}, -2, v{o_+3}")
        e(f"buffer_store_dwordx4 {R(o_)}, v7, {SR(S_WS)}, {'s42' if pr else 's40'} offen sc1")


def tap_issue(e, lab):
    e(f"s_mul_i32 s46, {sQ}, {4*TAPCH}")
    e(f"s_add_u32 s46, s46, {WS_KT}")
    e("s_add_u32 s46, s46, s48")
    for c in range(4):
        e(f"s_add_u32 m0, s49, {c*SCRCH}")
        e(f"s_add_u32 s47, s46, {c*TAPCH}")
        e(f"buffer_load_dwordx4 v0, {SR(S_WS)}, s47 offen sc1 lds")
    e(f"s_cmp_eq_u32 {sW}, 3")
    e(f"s_cbranch_scc0 {lab}")
    for c in range(4):
        e(f"s_add_u32 m0, s49, {c*SCRCH}")
        e(f"s_add_u32 s47, s46, {c*TAPCH}")
        e(f"buffer_load_dwordx4 v0, {SR(S_WS)}, s47 offen offset:1024 sc1 lds")


def p_ogather(e, lg, tm):
    e(f"s_lshl_b32 s40, {sRB}, 16")
    e(f"s_lshr_b32 s41, {sHG}, 2")
    e("s_lshl_b32 s41, s41, 15")
    e("s_add_u32 s40, s40, s41")
    e(f"s_lshl_b32 s41, {sW}, 13")
    e("s_add_u32 s40, s40, s41")
    e(f"s_add_u32 s40, s40, {sO}")
    e("s_add_u32 s42, s40, 4096")
    e(f"s_add_u32 s41, s41, {L_OT}")
    e("v_add_u32 v10, s41, v0")
    e(f"s_lshl_b32 s44, {sRB}, 1")
    e("s_lshl_b64 s[44:45], 3, s44")
    e(f"s_lshl_b32 s48, {sW}, 3")
    e("s_lshr_b32 s48, 0x00050708, s48")
    e("s_and_b32 s48, s48, 15")
    e("s_lshl_b32 s48, s48, 8")
    e(f"s_mul_i32 s49, {sW}, {4*SCRCH}")
    e(f"s_add_u32 s49, s49, {L_SCR + 64}")
    e("s_waitcnt vmcnt(2)")
    check_flags(e, "p_flag1", 114, "s[44:45]")
    e("s_waitcnt vmcnt(0)")
    tm.stamp((8, 24))
    e("s_barrier")
    e(f"s_cmp_eq_u32 {sLAY}, 1")
    e("s_cbranch_scc0 p_tap2")
    tap_issue(e, "p_tap2")
    e.label("p_tap2")
    loads = [f"buffer_load_dwordx4 {R(16+4*j)}, v0, {SR(S_WS)}, {'s42' if j >= 4 else 's40'} offen offset:{1024*(j&3)} sc1"
             for j in range(8)]
    poll_loop(e, "p_opoll", loads, [19 + 4 * j for j in range(8)], 11)
    tm.stamp((9, 24))
    for j in range(8):
        e(f"ds_write_b128 v10, {R(16+4*j)} offset:{1024*j}")
    e("s_waitcnt lgkmcnt(0)")
    e("s_barrier")
    tm.stamp((10, 24))
    e(f"s_cmp_eq_u32 {sLAY}, 0")
    e("s_cbranch_scc0 p_tap1")
    tap_issue(e, "p_tap1")
    e.label("p_tap1")
    e(f"buffer_load_dword v114, v115, {SR(S_DBG)}, 0 offen sc1")


def p_expand(e, lg):
    GA, V_, O_, t = 16, 28, 76, 108
    e(f"v_lshl_or_b32 v{t}, {sW}, 6, v1")
    e(f"v_lshlrev_b32 v{t}, 3, v{t}")
    e(f"v_sub_u32 v{t}, 2047, v{t}")
    e("s_sub_u32 s43, s49, s48")
    e(f"s_sub_u32 s41, s43, {4*(17152-128)}")
    for r in range(4):
        e(f"v_mov_b32 v{O_+r}, 0")
    e(f"v_mul_u32_u24 v{t+1}, {SCRCH}, v1")
    e(f"v_add3_u32 v{t+1}, v{t+1}, s43, -16")
    e(f"v_lshrrev_b32 v{t+2}, 1, v1")
    e(f"v_mul_u32_u24 v{t+2}, {KCOPY}, v{t+2}")
    e(f"v_and_b32 v{t+3}, 1, v1")
    e(f"v_lshl_add_u32 v{t+2}, v{t+3}, 4, v{t+2}")
    e(f"s_cmp_eq_u32 {sW}, 3")
    e("s_cselect_b64 exec, 15, 0")
    e(f"ds_write_b128 v{t+1}, {R(O_)}")
    e("s_cselect_b32 exec_lo, 0, -1")
    e(f"ds_write_b128 v{t+2}, {R(O_)} offset:{L_KT + 4096}")
    e("s_mov_b64 exec, -1")
    for x in range(0, 11, 2):
        xs = [x] + ([x + 1] if x < 10 else [])
        for y in xs:
            e(f"v_subrev_u32 v{V_+y}, {y}, v{t}")
            e(f"v_cvt_f32_i32 v{O_+4+(y&1)}, v{V_+y}")
        e(f"v_cvt_pk_bf16_f32 v{O_+6}, v{O_+4}, v{O_+5}")
        e(f"v_and_b32 v{O_+4}, 0xffff, v{O_+6}")
        e(f"v_lshrrev_b32 v{O_+5}, 16, v{O_+6}")
        for y in xs:
            e(f"v_lshl_add_u32 v{GA+y}, v{O_+4+(y&1)}, 2, s41")
            e(f"v_lshl_add_u32 v{O_+7}, v{V_+y}, 2, s43")
            e(f"v_cmp_gt_i32 vcc, 0x80, v{V_+y}")
            e(f"v_cndmask_b32 v{GA+y}, v{GA+y}, v{O_+7}, vcc")
    e(f"s_lshl_b32 s41, {sW}, 10")
    e(f"v_add_u32 v{t}, s41, v0")
    e("s_waitcnt vmcnt(1) lgkmcnt(0)")
    lg.reset()
    for c in range(4):
        for x in range(11):
            lg.op(f"ds_read_b32 v{V_+12*c+x}, v{GA+x} offset:{c*SCRCH}", (c, x))
    for c in range(4):
        o = O_ + 16 * (c & 1)
        for sg in range(4):
            for j in range(4):
                x = 2 * j + 3 - sg
                lg.need((c, x + 1))
                e(f"v_cvt_pk_bf16_f32 v{o+4*sg+j}, v{V_+12*c+x}, v{V_+12*c+x+1}")
            lg.op(f"ds_write_b128 v{t}, {R(o+4*sg)} offset:{L_KT + c*KCH + sg*KCOPY}", ("w", c))
        if c >= 1:
            lg.need(("w", c - 1))


def p_conv(e, lg, tm):
    X, Stt, Z, T_ = 16, 32, 64, 96
    p_expand(e, lg)
    e("s_waitcnt vmcnt(0)")
    check_flags(e, "p_flag2", 114, None)
    e(f"v_lshl_or_b32 v10, {sW}, 6, v1")
    e("v_lshlrev_b32 v4, 4, v10")
    e(f"v_lshl_add_u32 v5, v10, 2, 0")
    e(f"v_add_u32 v5, {L_U + UPAD}, v5")
    e("v_and_b32 v6, 127, v10")
    e("v_lshlrev_b32 v6, 2, v6")
    e(f"v_add_u32 v6, {L_Y}, v6")
    e(f"s_cmp_eq_u32 {sLAY}, 0")
    e("s_cbranch_scc0 p_oaddr2")
    e("v_lshrrev_b32 v11, 3, v10")
    e("v_lshlrev_b32 v11, 14, v11")
    e("v_and_b32 v10, 7, v10")
    e("v_lshl_add_u32 v11, v10, 4, v11")
    e(f"s_lshl_b32 s44, {sQ}, 7")
    e(f"s_add_u32 s44, s44, {WS_X2}")
    e("s_branch p_oaddr3")
    e.label("p_oaddr2")
    e("v_lshlrev_b32 v11, 11, v10")
    e(f"s_lshl_b32 s44, {sQ}, 3")
    e.label("p_oaddr3")
    e(f"s_lshl_b32 s45, {sQ}, 14")
    e(f"s_add_u32 s45, s45, {sXQ}")
    e(f"s_lshr_b32 s46, {sW}, 1")
    e(f"s_xor_b32 s46, s46, {sTY}")
    e(f"s_lshr_b32 s47, {sW}, 1")
    e(f"s_and_b32 s47, s47, {sTY}")
    e("s_mov_b32 s48, 0xffff0000")
    e(f"s_mov_b32 s49, {hx(f2u(1.0/512))}")
    e(f"v_mov_b32 v{T_+19}, {hx(f2u(1e-5))}")
    for r in range(4):
        e(f"v_mov_b32 v{T_+r}, 0")
    e(f"s_mul_i32 s41, {sW}, {USTR}")
    e(f"s_add_u32 s41, s41, {L_U}")
    e(f"v_add_u32 v10, s41, v0")
    e("s_waitcnt lgkmcnt(0)")
    tm.stamp((11, 24))
    e("s_barrier")
    e("s_mov_b32 exec_hi, 0")
    e(f"ds_write_b128 v10, {R(T_)}")
    e("s_mov_b32 exec_hi, -1")

    def loads(k):
        b = Stt + 16 * (k & 1)
        out = [f"s_add_u32 s40, s45, {4096*k}",
               f"buffer_load_dwordx4 {R(X+4*k)}, v4, {SR(S_WS)}, s40 offen sc1",
               f"s_add_u32 s40, {sST}, {4096*k}"]
        for cg in range(4):
            out.append(f"buffer_load_dwordx4 {R(b+4*cg)}, v4, {SR(S_WS)}, s40 offen sc1")
            if cg < 3:
                out.append("s_add_u32 s40, s40, 16384")
        return out

    def ready(k, vmn):
        b = Stt + 16 * (k & 1)
        regs = [X + 4 * k + 3] + [b + 4 * cg + 3 for cg in range(4)]
        if vmn is not None:
            e(f"s_waitcnt vmcnt({vmn})")
        sentinel_check(e, regs, T_)
        e(f"s_cbranch_vccz p_rdy{k}")
        poll_loop(e, f"p_xpoll{k}", loads(k), regs, T_)
        e.settle()
        e.label(f"p_rdy{k}")

    def norm(k):
        b, x, z = Stt + 16 * (k & 1), X + 4 * k, Z + 8 * k
        for j in range(4):
            e(f"v_add_f32 v{b+j}, v{b+j}, v{b+4+j}")
            e(f"v_add_f32 v{b+8+j}, v{b+8+j}, v{b+12+j}")
        for j in range(4):
            e(f"v_add_f32 v{b+j}, v{b+j}, v{b+8+j}")
        for r in range(2):
            e(f"v_mul_f32 v{b+2*r}, s49, v{b+2*r}")
            e(f"v_fma_f32 v{b+2*r+1}, v{b+2*r+1}, s49, v{T_+19}")
        for r in range(2):
            e(f"v_fma_f32 v{b+2*r+1}, -v{b+2*r}, v{b+2*r}, v{b+2*r+1}")
        for r in range(2):
            e(f"v_max_f32 v{b+2*r+1}, v{T_+19}, v{b+2*r+1}")
        for r in range(2):
            e(f"v_sqrt_f32 v{b+2*r+1}, v{b+2*r+1}")
        for j in range(4):
            e(f"v_lshlrev_b32 v{z+2*j}, 16, v{x+j}")
            e(f"v_and_b32 v{z+2*j+1}, s48, v{x+j}")
        e(f"v_cvt_pk_bf16_f32 v{b+4}, v{b+1}, v{b+3}")
        e(f"v_lshlrev_b32 v{b+1}, 16, v{b+4}")
        e(f"v_and_b32 v{b+3}, s48, v{b+4}")
        for r in range(2):
            e(f"v_rcp_f32 v{b+2*r+1}, v{b+2*r+1}")
        for j in range(8):
            e(f"v_sub_f32 v{T_+j}, v{z+j}, v{b+2*(j>>2)}")
        for j in range(8):
            e(f"v_mul_f32 v{T_+j}, v{T_+j}, v{b+2*(j>>2)+1}")
        for c in range(4):
            e(f"v_cvt_pk_bf16_f32 v{b+4+c}, v{T_+c}, v{T_+4+c}")
        for c in range(4):
            e(f"ds_write_b32 v5, v{b+4+c} offset:{USTR*c + 1024*k}")
        for c in range(4):
            e(f"v_lshlrev_b32 v{T_+c}, 16, v{b+4+c}")
            e(f"v_and_b32 v{T_+4+c}, s48, v{b+4+c}")
        for j in range(8):
            e(f"v_fma_f32 v{z+j}, v{T_+j}, s{56+(j&3)}, v{z+j}")

    def epi(k):
        z = Z + 8 * k
        e(f"s_xor_b32 s40, s46, {k & 1}")
        e("s_bitcmp1_b32 s40, 0")
        e(f"s_cbranch_scc1 p_noepi{k}")
        for c in range(4):
            e(f"ds_read_b32 v{T_+8+c}, v6 offset:{2048*k + 512*c}")
        e(f"s_add_u32 s40, s44, {k*524288}")
        e("s_waitcnt lgkmcnt(0)")
        for c in range(4):
            e(f"v_lshlrev_b32 v{T_+c}, 16, v{T_+8+c}")
            e(f"v_and_b32 v{T_+4+c}, s48, v{T_+8+c}")
        for j in range(8):
            e(f"v_add_f32 v{T_+j}, v{T_+j}, v{z+j}")
        for j in range(4):
            e(f"v_cvt_pk_bf16_f32 v{T_+8+j}, v{T_+2*j}, v{T_+2*j+1}")
        e(f"s_cmp_eq_u32 {sLAY}, 0")
        e(f"s_cbranch_scc0 p_epo{k}")
        e(f"v_min_u32 v{T_+11}, -2, v{T_+11}")
        e(f"buffer_store_dwordx4 {R(T_+8)}, v11, {SR(S_WS)}, s40 offen sc1")
        e(f"s_branch p_noepi{k}")
        e.label(f"p_epo{k}")
        e(f"buffer_store_dwordx2 {R(T_+8, 2)}, v11, {SR(S_OUT)}, s40 offen")
        e(f"buffer_store_dwordx2 {R(T_+10, 2)}, v11, {SR(S_OUT)}, s40 offen offset:1024")
        e.settle()
        e.label(f"p_noepi{k}")

    run(e, loads(0) + loads(1))
    ready(0, 5)
    tm.stamp((12, 24))
    norm(0)
    run(e, loads(2))
    e("s_waitcnt lgkmcnt(0)")
    e("s_barrier")
    tm.stamp((13, 24))
    ready(1, 5)
    norm(1)
    run(e, loads(3))
    e("s_waitcnt lgkmcnt(0)")
    e("s_barrier")
    tm.stamp((14, 24))
    ready(2, 5)
    norm(2)
    e("s_waitcnt vmcnt(0)")
    epi(0)
    e("s_waitcnt lgkmcnt(0)")
    e("s_barrier")
    tm.stamp((15, 24))
    ready(3, None)
    e("s_cmp_eq_u32 s47, 1")
    e("s_cbranch_scc1 p_noq3b")
    norm(3)
    e.settle()
    e.label("p_noq3b")
    epi(1)
    e("s_waitcnt lgkmcnt(0)")
    e("s_barrier")
    tm.stamp((16, 24))
    epi(2)
    e("s_barrier")
    tm.stamp((17, 24))
    epi(3)
    tm.stamp((18, 24))


def stage_x2(e, lab, B, tm):
    t = B + 40
    e(f"s_lshl_b32 s40, {sRB}, 16")
    e(f"s_lshl_b32 s41, {sW}, 10")
    e("s_add_u32 s40, s40, s41")
    e(f"s_add_u32 s40, s40, {WS_X2 - 16384}")
    e(f"s_cmp_eq_u32 {sRB}, 0")
    e("s_cselect_b32 s42, 0x7f000000, 0")
    e(f"v_add_u32 v{t}, s42, v0")
    e(f"v_and_b32 v{t+3}, 7, v1")
    e(f"s_and_b32 s43, {sW}, 1")
    e("s_lshl_b32 s43, s43, 2")
    e(f"v_lshrrev_b32 v{t+2}, 4, v1")
    e(f"v_xor_b32 v{t+2}, v{t+2}, v{t+3}")
    e(f"v_xor_b32 v{t+2}, s43, v{t+2}")
    e(f"v_lshlrev_b32 v{t+1}, 8, v{t+3}")
    e(f"v_lshl_add_u32 v{t+1}, v{t+2}, 4, v{t+1}")
    e(f"v_bfe_u32 v{t+2}, v1, 3, 1")
    e(f"v_lshl_add_u32 v{t+1}, v{t+2}, 3, v{t+1}")
    e(f"s_lshr_b32 s43, {sW}, 1")
    e("s_lshl_b32 s43, s43, 11")
    e(f"v_add_u32 v{t+1}, s43, v{t+1}")
    e(f"v_add_u32 v{t+2}, 0x10000, v{t+1}")
    e(f"v_cmp_eq_u32 s[44:45], 0, v{t+3}")
    loads = []
    for j in range(2):
        for T in range(5):
            loads.append(f"s_add_u32 s43, s40, {T*16384 + j*8192}")
            loads.append(f"buffer_load_dwordx4 {R(B+20*j+4*T)}, {'v0' if T else f'v{t}'}, {SR(S_WS)}, s43 offen sc1")
    e("s_waitcnt vmcnt(0)")
    tm.stamp(23)
    poll_loop(e, lab, loads, [B + 4 * n + 3 for n in range(10)], t + 3)
    tm.stamp(24)
    e(f"v_mov_b32 v{t+3}, 0x3f803f80")
    for j in range(2):
        for r in range(2):
            e(f"v_cndmask_b32 v{B+20*j+r}, v{B+20*j+r}, v{t+3}, s[44:45]")
    for j in range(2):
        for T in range(5):
            r = B + 20 * j + 4 * T
            a, off = (f"v{t+1}", T * 16384 + j * 8192) if T < 4 else (f"v{t+2}", j * 8192)
            e(f"ds_write_b64 {a}, v[{r}:{r+1}] offset:{off}")
            e(f"ds_write_b64 {a}, v[{r+2}:{r+3}] offset:{off + 128}")
    e("s_waitcnt lgkmcnt(0)")
    e("s_barrier")
    tm.stamp(25)


def next_layer(e):
    e(f"s_mov_b32 {sLAY}, 1")
    e(f"s_mov_b32 {sO}, {WS_O[1]}")
    e(f"s_mov_b32 {sXQ}, {WS_XQ[1]}")
    e(f"s_mov_b32 {sST}, {WS_ST[1]}")


def dskip_unpack(e):
    e("s_lshl_b32 s56, s66, 16")
    e("s_and_b32 s57, s66, 0xffff0000")
    e("s_lshl_b32 s58, s67, 16")
    e("s_and_b32 s59, s67, 0xffff0000")


def stop(e, tm, name):
    if STOP == name:
        tm.flush()
        e("s_branch k_done")


NCLR2 = 7


def gen_P(e, tm):
    lg, vm = Cnt(e, "lgkmcnt", 15), Cnt(e, "vmcnt", 63)
    KP, KT = 92, 216
    rest = prologue_loads(e, vm, KT, 0, 208)
    tm.stamp(1)
    P0, P1, K0, K1, U, WRT = kgen(KP, KT, lg, vm)
    xf_addr(e, "v2")
    e("v_add_u32 v3, 0x10000, v2")
    e("v_xor_b32 v10, 64, v2")
    e("v_xor_b32 v11, 64, v3")
    vb_addr(e, "v14", sW)
    e(f"v_add_u32 v15, {2*RSLOT}, v14")
    run(e, P0)
    weave(e, P1 + K0, rest)
    dskip_unpack(e)
    tm.stamp(2)
    for S in range(8):
        ingest(e, lg, vm, S, "v14", "v15", (0, 1), p_wreg)
        tm.stamp(46 + S)
        if S == 1:
            e(f"s_lshl_b32 s38, {sRB}, 3")
            e(f"s_add_u32 s38, s38, {sHG}")
            e("v_mov_b32 v8, 1")
            e(f"s_cmp_eq_u32 {sW}, 0")
            e("s_cselect_b64 exec, 1, 0")
            vm.op(f"buffer_store_byte v8, off, {SR(S_DBG)}, s38 sc1")
            e("s_mov_b64 exec, -1")
        if S == 6:
            WRT()
        side = K1[S] if S < 4 else U[S - 4] if S < 6 else []
        weave(e, p_gemm(lg, 2 * S, 2 * S + 2, True), side)
    for r in range(4):
        e(f"v_mov_b32_dpp v{P_CSQ+r}, v{P_CSQ+r} row_newbcast:0 row_mask:0xf bank_mask:0xf")
        e(f"v_mov_b32_dpp v{P_CSK+r}, v{P_K+r} row_newbcast:0 row_mask:0xf bank_mask:0xf")
    e(f"s_lshr_b32 s38, {sW}, 1")
    e(f"s_mul_i32 s39, s38, {4*TAPCH}")
    e(f"s_and_b32 s40, {sW}, 1")
    e(f"s_mul_i32 s40, s40, {TAPCH//2}")
    e("s_add_u32 s39, s39, s40")
    e(f"s_add_u32 s39, s39, {L_PART}")
    e("v_add_u32 v8, s39, v0")
    for rnd in range(2):
        for q in range(4):
            e(f"ds_read_b128 {R(52 + 16*rnd + 4*q)}, v8 offset:{1024*rnd + TAPCH*q}")
    e(f"s_lshl_b32 s39, {sQ}, 1")
    e(f"s_add_u32 s39, s39, {sTY}")
    e("s_lshl_b32 s39, s39, 1")
    e("s_add_u32 s39, s39, s38")
    e(f"s_mul_i32 s39, s39, {TAPCH}")
    e("s_add_u32 s39, s39, s40")
    e(f"s_add_u32 s44, s39, {WS_KT}")
    for rnd in range(2):
        b = 52 + 16 * rnd
        e(f"s_waitcnt lgkmcnt({4 - 4*rnd})")
        for r in range(4):
            e(f"v_add_f32 v{b+r}, v{b+r}, v{b+4+r}")
            e(f"v_add_f32 v{b+8+r}, v{b+8+r}, v{b+12+r}")
        for r in range(4):
            e(f"v_add_f32 v{b+r}, v{b+r}, v{b+8+r}")
        if rnd:
            e(f"s_mov_b64 exec, {(1 << 18) - 1}")
        e(f"buffer_store_dwordx4 {R(b)}, v0, {SR(S_WS)}, s44 offen offset:{1024*rnd} sc1")
    e("s_mov_b64 exec, -1")
    e(f"s_lshl_b32 s44, {sW}, 1")
    run(e, clear_set(e, vm, 1, 92, "s44", 2))
    e("v_lshrrev_b32 v96, 3, v1")
    e("v_lshlrev_b32 v96, 14, v96")
    e("v_and_b32 v97, 7, v1")
    e("v_lshl_add_u32 v96, v97, 4, v96")
    e(f"s_and_b32 s39, {sW}, 1")
    e(f"s_xor_b32 s39, s39, {sTY}")
    e("s_add_u32 s39, s39, s44")
    e("s_lshl_b32 s39, s39, 18")
    e(f"s_lshl_b32 s40, {sQ}, 7")
    e("s_add_u32 s39, s39, s40")
    e(f"s_add_u32 s39, s39, {WS_X2}")
    e(f"buffer_store_dwordx4 {R(92)}, v96, {SR(S_WS)}, s39 offen sc1")
    e("s_add_u32 s39, s39, 131072")
    e(f"buffer_store_dwordx4 {R(92)}, v96, {SR(S_WS)}, s39 offen sc1")
    p_setup_att(e)
    tm.flush()
    e.settle()
    e.label("p_common")
    e.reset_hist()
    lg.reset()
    tm.stamp((5, 24))
    e("s_barrier")
    tm.stamp((6, 24))
    p_attention(e, lg, tm)
    tm.stamp((7, 24))
    p_ogather(e, lg, tm)
    tm.flush()
    p_conv(e, lg, tm)
    tm.flush()
    e(f"s_cmp_eq_u32 {sLAY}, 1")
    e("s_cbranch_scc1 k_done")
    stop(e, tm, "conv1")
    next_layer(e)
    e("v_xor_b32 v10, 64, v2")
    e("v_xor_b32 v11, 64, v3")
    stage_x2(e, "p_x2poll", 16, tm)
    lg.reset()
    run(e, p_gemm(lg, 0, 16, False))
    tm.flush()
    e.settle()
    e("s_branch p_common")


V_W, V_CS = 188, 252
V_A, V_G1, V_S1, V_G0, V_ONE, V_F = 16, 36, 40, 44, 48, 52
V_XS = ["v2", "v3", "v7", "v8", "v9"]
V_XO = ["v10", "v11", "v12", "v13", "v14"]
V_RES, V_WO, V_ACC = 24, 48, 32


def v_wreg(s, n):
    return V_W + 4 * s


def v_gemm(lg, s0, s1):
    def reads(s):
        return [lambda s=s, u=u: lg.op(f"ds_read_b128 {R(V_F + 20*(s & 1) + 4*u)}, {(V_XS, V_XO)[s & 1][u]} offset:{(s >> 1)*2048}", ("x", s, u))
                for u in range(5)]
    ops = reads(s0)
    e = lg.e
    for s in range(s0, s1):
        F = lambda u: R(V_F + 20 * (s & 1) + 4 * u)
        ms = []
        for u, c, a_, b_ in ((0, V_A, F(0), R(V_W + 4 * s)), (0, V_G0, F(0), F(0)), (1, V_A + 4, F(1), R(V_W + 4 * s)),
                             (1, V_G1, F(1), F(1)), (1, V_S1, R(V_ONE), F(1)), (2, V_A + 8, F(2), R(V_W + 4 * s)),
                             (3, V_A + 12, F(3), R(V_W + 4 * s)), (4, V_A + 16, F(4), R(V_W + 4 * s))):
            def m(s=s, u=u, c=c, a_=a_, b_=b_):
                lg.need(("x", s, u), ("w", s))
                e(f"{MF} {R(c)}, {a_}, {b_}, {'0' if s == 0 else R(c)}")
            ms.append(m)
        side = reads(s + 1) if s + 1 < s1 else []
        for i, m in enumerate(ms):
            ops.append(m)
            if i >= 1 and side:
                ops.append(side.pop(0))
        ops += side
    return ops


def v_slots(e):
    xf_addr(e, "v2")
    for u in range(1, 5):
        e(f"s_add_u32 s38, {sWQ}, {u-1}")
        e("s_and_b32 s38, s38, 3")
        e("s_add_u32 s38, s38, 1")
        e(f"s_mov_b32 s{51+u}, s38")
        e("s_lshl_b32 s38, s38, 14")
        e(f"v_add_u32 {V_XS[u]}, s38, v2")
    for u in range(5):
        e(f"v_xor_b32 {V_XO[u]}, 64, {V_XS[u]}")
    for r in range(4):
        e(f"v_mov_b32 v{V_ONE+r}, 0x3f803f80")


def wo_src(e, dst):
    e(f"v_lshrrev_b32 v10, 4, v1")
    e(f"v_bfe_u32 v11, v1, 2, 2")
    e(f"v_lshl_add_u32 {dst}, v10, 3, v11")
    e(f"v_lshlrev_b32 {dst}, 10, {dst}")
    e("v_lshrrev_b32 v11, 1, v1")
    e("v_xor_b32 v11, v11, v10")
    e("v_and_b32 v11, 1, v11")
    e(f"v_lshl_add_u32 {dst}, v11, 5, {dst}")
    e("v_and_b32 v11, 1, v1")
    e(f"v_lshl_add_u32 {dst}, v11, 4, {dst}")
    e(f"s_and_b32 s38, {sHG}, 3")
    e("s_lshl_b32 s38, s38, 8")
    e(f"s_lshl_b32 s39, {sWQ}, 6")
    e("s_add_u32 s38, s38, s39")
    e(f"v_add_u32 {dst}, s38, {dst}")


def wo_issue(e, vm, src, c0, c1):
    if c0 < 7:
        e(f"s_mul_i32 s38, {sWQ}, 14336")
        e(f"s_add_u32 m0, s38, {L_WOA + 2048*c0}")
    else:
        e(f"s_mul_i32 s38, {sWQ}, 18432")
        e(f"s_add_u32 m0, s38, {2048*(c0-7)}")
    for c in range(c0, c1):
        for hi in range(2):
            e(f"s_mov_b32 s38, {c*32768 + hi*4096}")
            vm.op(f"buffer_load_dwordx4 {src}, {SR(S_WO)}, s38 offen lds", ("wo", c))
            if not (c == c1 - 1 and hi == 1):
                e("s_add_u32 m0, m0, 1024")


def v_post(e, lg, tm):
    T = 52
    e("v_and_b32 v10, 15, v1")
    e("v_lshrrev_b32 v11, 4, v1")
    e("v_and_b32 v12, 1, v1")
    e("v_cmp_eq_u32 s[40:41], 1, v12")
    e("v_and_b32 v12, 2, v1")
    e("v_cmp_eq_u32 s[42:43], 2, v12")
    e(f"s_mov_b32 s44, {hx(f2u(1.0/512))}")
    e(f"v_mov_b32 v13, {hx(f2u(1e-5))}")
    e("s_lshl_b32 s45, s52, 7")
    e(f"s_add_u32 s45, s45, {L_STQ}")
    e("v_lshl_add_u32 v14, v10, 3, s45")
    e("s_lshl_b32 s45, s52, 6")
    e(f"s_add_u32 s45, s45, {L_STV}")
    e("v_lshl_add_u32 v15, v10, 2, s45")
    e(f"v_lshlrev_b32 v{T+8}, 3, v10")
    e(f"v_lshlrev_b32 v{T+9}, 2, v10")
    e(f"v_mov_b32 v{T+2}, v{V_G0}")
    e(f"v_mov_b32 v{T+3}, v{V_G0}")
    e(f"v_permlane16_swap_b32 v{T+2}, v{T+3}")
    e(f"v_mov_b32 v{T+3}, v{T+2}")
    e(f"v_permlane32_swap_b32 v{T+2}, v{T+3}")
    for g_, d in ((V_G1, T + 1), (V_G0, T + 3)):
        e(f"v_cndmask_b32 v{T+4}, v{g_}, v{g_+1}, s[40:41]")
        e(f"v_cndmask_b32 v{T+5}, v{g_+2}, v{g_+3}, s[40:41]")
        e(f"v_cndmask_b32 v{d}, v{T+4}, v{T+5}, s[42:43]")
    e(f"v_mul_f32 v{T}, s44, v{V_S1}")
    e(f"v_mul_f32 v{T+2}, s44, v{T+2}")
    for d in (T, T + 2):
        e(f"v_fma_f32 v{d+1}, v{d+1}, s44, v13")
    for d in (T, T + 2):
        e(f"v_fma_f32 v{d+1}, -v{d}, v{d}, v{d+1}")
    for d in (T, T + 2):
        e(f"v_max_f32 v{d+1}, v13, v{d+1}")
    for d in (T, T + 2):
        e(f"v_sqrt_f32 v{d+1}, v{d+1}")
    e(f"v_cvt_pk_bf16_f32 v{T+4}, v{T}, v{T+2}")
    e(f"v_cvt_pk_bf16_f32 v{T+5}, v{T+1}, v{T+3}")
    e(f"v_lshlrev_b32 v{T}, 16, v{T+4}")
    e(f"v_and_b32 v{T+2}, 0xffff0000, v{T+4}")
    e(f"v_lshlrev_b32 v{T+1}, 16, v{T+5}")
    e(f"v_and_b32 v{T+3}, 0xffff0000, v{T+5}")
    e(f"v_rcp_f32 v{T+1}, v{T+1}")
    e(f"v_rcp_f32 v{T+3}, v{T+3}")
    e("s_mov_b32 exec_lo, 0x00f0000f")
    e("s_mov_b32 exec_hi, 0xf0000f00")
    e(f"ds_write_b64 v14, v[{T}:{T+1}]")
    e(f"ds_write_b32 v15, v{T}")
    e(f"ds_write_b32 v15, v{T+1} offset:320")
    e(f"ds_write_b64 v{T+8}, v[{T+2}:{T+3}] offset:{L_STQ - 131072}") if False else None
    e(f"v_add_u32 v{T+8}, {L_STQ}, v{T+8}")
    e(f"v_add_u32 v{T+9}, {L_STV}, v{T+9}")
    e(f"ds_write_b64 v{T+8}, v[{T+2}:{T+3}]")
    e(f"ds_write_b32 v{T+9}, v{T+2}")
    e(f"ds_write_b32 v{T+9}, v{T+3} offset:320")
    e("s_mov_b64 exec, 1")
    e(f"v_mov_b32 v12, {L_CNT}")
    e("v_mov_b32 v13, 1")
    e("ds_add_u32 v12, v13")
    e("s_mov_b64 exec, -1")
    e(f"v_mov_b32 v12, {L_CNT}")
    e(f"s_and_b32 s45, {sWQ}, 1")
    e("s_lshl_b32 s45, s45, 2")
    e("v_lshrrev_b32 v15, 1, v11")
    e("v_xor_b32 v15, v15, v10")
    e("v_xor_b32 v15, s45, v15")
    e("v_and_b32 v15, 7, v15")
    e("v_and_b32 v14, 7, v10")
    e("v_lshlrev_b32 v14, 8, v14")
    e("v_lshl_add_u32 v14, v15, 4, v14")
    e("v_lshrrev_b32 v15, 3, v10")
    e("v_lshl_add_u32 v14, v15, 14, v14")
    e("v_and_b32 v15, 1, v11")
    e("v_lshl_add_u32 v14, v15, 3, v14")
    e(f"s_lshr_b32 s45, {sHG}, 2")
    e("s_lshl_b32 s45, s45, 15")
    e(f"s_and_b32 s46, {sHG}, 3")
    e("s_lshl_b32 s46, s46, 12")
    e("s_add_u32 s45, s45, s46")
    e(f"s_lshr_b32 s46, {sWQ}, 1")
    e("s_lshl_b32 s46, s46, 11")
    e("s_add_u32 s45, s45, s46")
    e("s_add_u32 s45, s45, 16384")
    e("v_add_u32 v14, s45, v14")
    e("v_xor_b32 v15, 32, v14")
    VS, VA, XA = 56, 96, 101
    e(f"v_lshlrev_b32 v{VA}, 4, v11")
    e(f"v_add_u32 v{VA}, {L_STV}, v{VA}")
    e(f"s_mul_i32 s45, {sWQ}, 2560")
    e(f"s_add_u32 s45, s45, {L_VX}")
    e(f"v_lshl_add_u32 v{XA}, v1, 3, s45")
    for u in range(1, 5):
        e(f"s_lshl_b32 s45, s{51+u}, 6")
        e(f"v_add_u32 v{VA+u}, s45, v{VA}")
        e(f"s_lshl_b32 s45, s{51+u}, 9")
        e(f"v_add_u32 v{XA+u}, s45, v{XA}")
    e(f"s_lshl_b32 s45, {sLAY}, 2")
    e("s_add_u32 s45, s45, 4")
    e("s_mov_b32 s38, 0")
    e.loop_begin("v_spin")
    e("ds_read_b32 v13, v12")
    for u in range(5):
        e(f"ds_read_b128 {R(VS+8*u)}, v{VA+u}")
        e(f"ds_read_b128 {R(VS+8*u+4)}, v{VA+u} offset:320")
    e("s_add_u32 s38, s38, 1")
    e("s_waitcnt lgkmcnt(10)")
    e("v_cmp_gt_u32 vcc, s45, v13")
    e(f"s_cmp_gt_u32 s38, {SPIN}")
    e("s_cbranch_scc1 v_spin_x")
    e.loop_end("s_cbranch_vccnz v_spin", "v_spin")
    e.label("v_spin_x")
    RES = 106
    for ct in range(2):
        e(f"ds_read_b64 v[{RES+4*ct}:{RES+4*ct+1}], v{14+ct}")
        e(f"ds_read_b64 v[{RES+4*ct+2}:{RES+4*ct+3}], v{14+ct} offset:128")
    e("s_waitcnt lgkmcnt(4)")
    for u in range(5):
        c = V_A + 4 * u
        for h in range(2):
            e(f"v_pk_fma_f32 v[{c+2*h}:{c+2*h+1}], v[{VS+8*u+2*h}:{VS+8*u+2*h+1}], v[{V_CS}:{V_CS+1}], v[{c+2*h}:{c+2*h+1}] op_sel_hi:[1,0,1] neg_lo:[1,0,0] neg_hi:[1,0,0]")
    for u in range(5):
        c = V_A + 4 * u
        for h in range(2):
            e(f"v_pk_mul_f32 v[{c+2*h}:{c+2*h+1}], v[{c+2*h}:{c+2*h+1}], v[{VS+8*u+4+2*h}:{VS+8*u+4+2*h+1}]")
    for u in range(5):
        c = V_A + 4 * u
        e(f"v_cvt_pk_bf16_f32 v{c}, v{c}, v{c+1}")
        e(f"v_cvt_pk_bf16_f32 v{c+1}, v{c+2}, v{c+3}")
        e(f"ds_write_b64 v{XA+u}, v[{c}:{c+1}]")
    e("s_waitcnt lgkmcnt(0)")
    for r in range(8):
        e(f"v_mov_b32 v{V_RES+r}, v{RES+r}")


def v_proj(e, lg, vm, tm):
    wo_src(e, "v4")
    e(f"s_cmp_eq_u32 {sLAY}, 0")
    e("s_cbranch_scc0 v_nofirst")
    vm.reset()
    wo_issue(e, vm, "v4", 0, 7)
    e.label("v_nofirst")
    wo_issue(e, vm, "v4", 7, 16)
    e("v_lshrrev_b32 v10, 2, v1")
    e("v_lshlrev_b32 v10, 6, v10")
    e("v_bfe_u32 v11, v1, 4, 1")
    e("v_lshl_add_u32 v10, v11, 5, v10")
    e("v_and_b32 v11, 3, v1")
    e("v_lshl_add_u32 v10, v11, 3, v10")
    e(f"s_mul_i32 s38, {sWQ}, 14336")
    e(f"s_add_u32 s38, s38, {L_WOA}")
    e("v_add_u32 v12, s38, v10")
    e("v_xor_b32 v13, 32, v12")
    e(f"s_mul_i32 s38, {sWQ}, 18432")
    e("v_add_u32 v14, s38, v10")
    e("v_xor_b32 v15, 32, v14")
    for c in range(16):
        vm.need(("wo", c))
        for ct in range(2):
            for hi in range(2):
                r = V_WO + 8 * c + 4 * ct + 2 * hi
                b, off = (12 + ct, 2048 * c) if c < 7 else (14 + ct, 2048 * (c - 7))
                e(f"ds_read_b64_tr_b16 v[{r}:{r+1}], v{b} offset:{off + 1024*hi}")
        if c == 6:
            tm.stamp((7, 24))
            e("s_waitcnt lgkmcnt(0)")
            e("s_barrier")
    tm.stamp((8, 24))
    e("v_and_b32 v6, 15, v1")
    e("v_lshrrev_b32 v7, 4, v1")
    e("v_lshlrev_b32 v5, 4, v6")
    e("v_lshl_add_u32 v184, v7, 9, v5")
    e(f"v_add_u32 v184, {L_OT}, v184")
    e("v_lshl_add_u32 v185, v7, 14, v5")
    e(f"v_add_u32 v186, {L_SP}, v5")
    e(f"s_lshl_b32 s38, {sWQ}, 8")
    e("v_add_u32 v187, s38, v186")
    xq_base(e, "s44", sXQ)
    e(f"s_lshl_b32 s38, {sWQ}, 17")
    e("s_add_u32 s44, s44, s38")
    e("s_add_u32 s45, s44, 65536")
    st_base(e, "s46", sST)
    e("s_mov_b32 s47, 0xffff0000")
    e("s_waitcnt lgkmcnt(0)")
    tm.stamp((9, 24))
    e("s_barrier")
    tm.stamp((10, 24))
    lg.reset()
    BR = [8, 16, 176]

    def rd(s):
        for rt in range(2):
            lg.op(f"ds_read_b128 {R(BR[s % 3] + 4*rt)}, v184 offset:{2048*s + 256*rt}", ("o", s, rt))
    rd(0)
    rd(1)
    for s in range(16):
        for rt in range(2):
            for ct in range(2):
                lg.need(("o", s, rt))
                c = V_ACC + 4 * (2 * ct + rt)
                e(f"{MF} {R(c)}, {R(V_WO + 8*s + 4*ct)}, {R(BR[s % 3] + 4*rt)}, {'0' if s == 0 else R(c)}")
                if rt == 0 and ct == 0 and s + 2 < 16:
                    rd(s + 2)
    tm.stamp((11, 24))
    A_, X_, O_, S_ = 48, 64, 80, 88
    for q in range(2):
        for j in range(4):
            e(f"v_cvt_pk_bf16_f32 v{O_+4*q+j}, v{V_ACC+8*q+2*j}, v{V_ACC+8*q+2*j+1}")
    for j in range(8):
        e(f"v_lshlrev_b32 v{X_+2*j}, 16, v{V_RES+j}")
        e(f"v_and_b32 v{X_+2*j+1}, s47, v{V_RES+j}")
    for j in range(8):
        e(f"v_lshlrev_b32 v{A_+2*j}, 16, v{O_+j}")
        e(f"v_and_b32 v{A_+2*j+1}, s47, v{O_+j}")
    for j in range(16):
        e(f"v_add_f32 v{A_+j}, v{A_+j}, v{X_+j}")
    for j in range(8):
        e(f"v_cvt_pk_bf16_f32 v{O_+j}, v{A_+2*j}, v{A_+2*j+1}")
    for ct in range(2):
        e(f"v_min_u32 v{O_+4*ct+3}, -2, v{O_+4*ct+3}")
        e(f"buffer_store_dwordx4 {R(O_+4*ct)}, v185, {SR(S_WS)}, s{44+ct} offen sc1")
    e(f"v_mov_b32 v{S_+4}, 0x3f803f80")
    for r in range(4):
        e(f"v_mov_b32 v{S_+r}, 0")
    for ct in range(2):
        for h in range(2):
            for rt in range(2):
                o_ = O_ + 4 * ct + 2 * rt + h
                e(f"v_dot2c_f32_bf16 v{S_+2*rt}, v{o_}, v{S_+4}")
                e(f"v_dot2c_f32_bf16 v{S_+2*rt+1}, v{o_}, v{o_}")
    run(e, gswap([f"v{S_+r}" for r in range(4)], [f"v{S_+4+r}" for r in range(4)], "v_add_f32"))
    e(f"v_mov_b32 v{S_+4}, {L_CNT + 4}")
    e(f"v_mov_b32 v{S_+5}, 1")
    e("s_mov_b64 exec, 0xffff")
    e(f"ds_write_b128 v187, {R(S_)}")
    e("s_mov_b64 exec, 1")
    e(f"ds_add_rtn_u32 v{S_+6}, v{S_+4}, v{S_+5}")
    e("s_mov_b64 exec, 0xffff")
    for w in range(4):
        e(f"ds_read_b128 {R(A_+4*w)}, v186 offset:{256*w}")
    e("s_waitcnt lgkmcnt(4)")
    e(f"v_readfirstlane_b32 s38, v{S_+6}")
    e("s_and_b32 s38, s38, 3")
    e("s_cmp_eq_u32 s38, 3")
    e("s_cbranch_scc0 v_nolast")
    e("s_waitcnt lgkmcnt(0)")
    for r in range(4):
        e(f"v_add_f32 v{A_+r}, v{A_+r}, v{A_+4+r}")
        e(f"v_add_f32 v{A_+8+r}, v{A_+8+r}, v{A_+12+r}")
    for r in range(4):
        e(f"v_add_f32 v{A_+r}, v{A_+r}, v{A_+8+r}")
    e(f"v_min_u32 v{A_+3}, -2, v{A_+3}")
    e(f"buffer_store_dwordx4 {R(A_)}, v5, {SR(S_WS)}, s46 offen sc1")
    e.label("v_nolast")
    e("s_mov_b64 exec, -1")
    tm.stamp((12, 24))


def v_conv(e, lg, vm, tm):
    ACC, BR, AS, AR = 16, 32, 48, 64
    NRES = 31
    e("v_and_b32 v10, 15, v1")
    e("v_lshrrev_b32 v11, 4, v1")
    e("v_and_b32 v12, 3, v1")
    e(f"v_mul_u32_u24 v2, {KCOPY}, v12")
    e("v_bfe_u32 v12, v1, 2, 2")
    e("v_lshlrev_b32 v12, 3, v12")
    e("v_sub_u32 v2, v2, v12")
    e("v_lshl_add_u32 v2, v11, 4, v2")
    e(f"s_mul_i32 s38, {sWQ}, {KCH}")
    e(f"s_add_u32 s38, s38, {L_KT + 24}")
    e("v_add_u32 v2, s38, v2")
    e("v_lshlrev_b32 v3, 5, v10")
    e("v_lshl_add_u32 v7, v11, 3, v3")
    e("v_lshl_add_u32 v3, v11, 4, v3")
    e(f"s_mul_i32 s38, {sWQ}, {USTR}")
    e(f"s_add_u32 s38, s38, {L_U + 32}")
    e("v_add_u32 v3, s38, v3")
    e(f"s_lshl_b32 s38, {sWQ}, 9")
    e(f"s_add_u32 s38, s38, {L_Y}")
    e("v_add_u32 v7, s38, v7")
    e("s_waitcnt lgkmcnt(0)")
    e("s_barrier")
    tm.stamp((13, 24))
    e(f"s_cmp_eq_u32 {sLAY}, 0")
    e("s_cbranch_scc0 v_nopre")
    wo_issue(e, vm, "v4", 0, 7)
    e.label("v_nopre")

    def ldA(c, r, tag):
        for hi in range(2):
            lg.op(f"ds_read_b64 v[{r+2*hi}:{r+2*hi+1}], v2 offset:{64*(63-c) + 8*hi}", tag)
    lg.reset()
    for c in range(NRES):
        ldA(c, AR + 4 * c, ("A", c))
    e("s_waitcnt lgkmcnt(0)")
    e("s_barrier")
    tm.stamp((14, 24))
    e(f"s_cmp_eq_u32 {sTY}, 0")
    e("s_cbranch_scc0 v_conv1")
    for ty, tiles in ((0, (0, 3, 4, 7)), (1, (1, 2, 5, 6))):
        e.label(f"v_conv{ty}")
        e.reset_hist()
        lg.reset()
        segs = [range(-7, 9), range(9, 25), range(25, 41), range(41, 57)]
        ms = [(k, f, ti, 8 * q - f) for k in range(4) for f in segs[k] for ti, q in enumerate(tiles)
              if 0 <= 8 * q - f <= 8 * q + 7]
        sa = [i for i, m in enumerate(ms) if m[3] >= NRES]
        sidx = {i: n for n, i in enumerate(sa)}
        fl = sorted(set(m[1] for m in ms))
        lastuse = {}
        for i, m in enumerate(ms):
            lastuse[m[1]] = i
        seg_of = {m[1]: m[0] for m in ms}
        nA = nB = 0
        started = set()
        cur = -1
        for i, (k, f, ti, c) in enumerate(ms):
            if k != cur:
                if cur >= 0:
                    lg.all()
                    e("s_barrier")
                    tm.stamp((14 + k, 24))
                cur = k
            fi = fl.index(f)
            while nB < len(fl) and nB <= fi + 3 and seg_of[fl[nB]] <= k and (nB < 4 or lastuse[fl[nB - 4]] < i):
                lg.op(f"ds_read_b128 {R(BR + 4*(nB % 4))}, v3 offset:{64*(fl[nB]+7)}", ("B", fl[nB]))
                nB += 1
            done = len([j for j in sa if j < i])
            while nA < len(sa) and nA < done + 4 and nA <= done + 3:
                ldA(ms[sa[nA]][3], AS + 4 * (nA % 4), ("S", nA))
                nA += 1
            lg.need(("B", f))
            if c >= NRES:
                lg.need(("S", sidx[i]))
                a_ = AS + 4 * (sidx[i] % 4)
            else:
                a_ = AR + 4 * c
            acc = R(ACC + 4 * ti)
            e(f"{MF} {acc}, {R(a_)}, {R(BR + 4*(fi % 4))}, {acc if ti in started else '0'}")
            started.add(ti)
            for j in ((i - 2, i) if (i + 1 == len(ms) or ms[i + 1][0] != k) else (i - 2,)):
                pass
            fin = [j for j in range(max(0, i - 2), i + 1) if ms[j][3] == 0 and ms[j][0] == k]
            endseg = i + 1 == len(ms) or ms[i + 1][0] != k
            for j in fin:
                if (j == i - 2 or endseg) and ("Y", k) not in lg.tags:
                    t_ = ACC + 4 * ms[j][2]
                    e(f"v_cvt_pk_bf16_f32 v8, v{t_}, v{t_+1}")
                    e(f"v_cvt_pk_bf16_f32 v9, v{t_+2}, v{t_+3}")
                    lg.op(f"ds_write_b64 v7, v[8:9] offset:{2048*k}", ("Y", k))
        lg.all()
        e("s_barrier")
        tm.stamp((18, 24))
        tm.flush()
        if ty == 0:
            e("s_branch v_conv_done")
    e.label("v_conv_done")


def gen_V(e, tm):
    lg, vm = Cnt(e, "lgkmcnt", 15), Cnt(e, "vmcnt", 63)
    KP, KT = 92, 116
    rest = prologue_loads(e, vm, KT, 1, 148)
    tm.stamp(1)
    P0, P1, K0, K1, U, WRT = kgen(KP, KT, lg, vm)
    vb_addr(e, "v15", sWQ)
    e(f"v_add_u32 v156, {2*RSLOT}, v15")
    v_slots(e)
    run(e, P0)
    weave(e, P1 + K0, rest)
    tm.stamp(2)
    for S in range(8):
        ingest(e, lg, vm, S, "v15", "v156", (2,), v_wreg)
        tm.stamp(46 + S)
        if S == 6:
            WRT()
        side = list(K1[S] if S < 4 else U[S - 4] if S < 6 else [])
        if 1 <= S <= 5:
            for n_, op in enumerate(w_issue(e, vm, S + 2, (0, 1))):
                side.insert(min(len(side), 4 * n_), op)
        weave(e, v_gemm(lg, 2 * S, 2 * S + 2), side)
    e(f"v_mov_b32 v{V_CS}, v{V_A}")
    e(f"v_mov_b32 v{V_CS+1}, v{V_A}")
    e(f"v_permlane16_swap_b32 v{V_CS}, v{V_CS+1}")
    e(f"v_mov_b32 v{V_CS+1}, v{V_CS}")
    e(f"v_permlane32_swap_b32 v{V_CS}, v{V_CS+1}")
    tm.flush()
    e.settle()
    e.label("v_common")
    e.reset_hist()
    lg.reset()
    tm.stamp((21, 24))
    v_post(e, lg, tm)
    e("s_setprio 0")
    tm.stamp((5, 24))
    e("s_barrier")
    tm.stamp((6, 24))
    v_proj(e, lg, vm, tm)
    tm.flush()
    v_conv(e, lg, vm, tm)
    e(f"s_cmp_eq_u32 {sLAY}, 1")
    e("s_cbranch_scc1 k_done")
    stop(e, tm, "conv1")
    next_layer(e)
    v_slots(e)
    stage_x2(e, "v_x2poll", 52, tm)
    e("s_setprio 1")
    lg.reset()
    run(e, v_gemm(lg, 0, 16))
    tm.flush()
    e.settle()
    e("s_branch v_common")


HEADER = open(os.path.join(os.path.dirname(os.path.abspath(__file__)), "header.txt")).read()


def main(out_path):
    e = Emitter()
    tm = Stamper(e)
    kn = NAME + "_kernel"
    e.raw(f".globl {kn}")
    e.raw(".p2align 8")
    e.raw(f".type {kn},@function")
    e.label(kn)
    prologue(e, tm)
    e(f"s_cmp_lt_u32 {sW}, 4")
    e("s_cbranch_scc0 v_role")
    pend = list(tm.pend)
    gen_P(e, tm)
    e.label("v_role")
    e.reset_hist()
    tm.pend = pend
    gen_V(e, tm)
    e.label("k_done")
    e.reset_hist()
    if STAMPS:
        e("v_writelane_b32 v255, s98, 61")
    tm.dump()
    e.label("k_exit")
    e("s_endpgm")
    txt = HEADER + "; Generated by gen/gen2.py (own generator script).\n"
    if os.environ.get("LIST", "0") == "1":
        txt += f"; @launch kernel={kn} grid=(256,1,1) block=(512,1,1) lds={LDS_BYTES}\n"
    else:
        txt += f"; @launch grid=(256,1,1) block=(512,1,1) lds={LDS_BYTES}\n"
    txt += '.amdgcn_target "amdgcn-amd-amdhsa--gfx950"\n.text\n' + e.text()
    txt += f'''.section .rodata,"a"
.p2align 6
.amdhsa_kernel {kn}
  .amdhsa_next_free_vgpr 256
  .amdhsa_next_free_sgpr 102
  .amdhsa_accum_offset 256
  .amdhsa_group_segment_fixed_size 0
  .amdhsa_kernarg_size 120
  .amdhsa_user_sgpr_count 2
  .amdhsa_user_sgpr_kernarg_segment_ptr 1
  .amdhsa_system_sgpr_workgroup_id_x 1
.end_amdhsa_kernel
'''
    open(out_path, "w").write(txt)


if __name__ == "__main__":
    main(sys.argv[1] if len(sys.argv) > 1 else os.path.join(os.path.dirname(os.path.abspath(__file__)), "..", NAME + ".s"))
```

```python
import os
import struct
import sys

sys.path.insert(0, os.path.dirname(os.path.abspath(__file__)))
from asmdsl import Emitter

NAME = "interleave_layers__sliding_local_dilated__ssm_conv_s4__prompt"
MB = 1 << 20
WS_O = [0, 2 * MB]
WS_XQ = [4 * MB, 6 * MB]
WS_X2 = 8 * MB
WS_ST = [10 * MB, 10 * MB + 65536]
WS_KT = 11 * MB
WS_FL = 13 * MB
WS_RANGE = 32 * MB
WS_DBG = 64 * MB
KCOPY, KCH, KQ = 4160, 16640, 66560

L_RING, RSLOT = 81920, 24576
L_VX = 81920
L_OT = 81920
L_WOA = 98304
L_MISC = 155648
L_STQ = L_MISC
L_STV = L_MISC + 640
L_CNT = L_MISC + 1280
L_SP = L_MISC + 1536
TAPCH = 2624
L_PART = L_RING + 2 * RSLOT
L_SCR, SCRCH = 114688, 2112
L_KT = 0
L_U, USTR, UPAD = 66560, 4608, 512
L_Y = 84992
LDS_BYTES = 163840

STAMPS = os.environ.get("STAMPS", "0") == "1"
STOP = os.environ.get("STOP", "")
SPIN = 1 << 17
TOUCH_AT = int(os.environ.get("TOUCH_AT", "1"))
FLAG_AT = int(os.environ.get("FLAG_AT", "3"))
CLR_AT = int(os.environ.get("CLR_AT", "6"))
CLR1 = int(os.environ.get("CLR1", "4"))
PUB_AT = int(os.environ.get("PUB_AT", "12"))
SCHED = [int(c) for c in os.environ.get("SCHED", "000011")]
EARLY_AT = int(os.environ.get("EARLY_AT", "9"))
PLAIN = int(os.environ.get("PLAIN", "1"))
WOSEG = int(os.environ.get("WOSEG", "1"))
WOSTEP = int(os.environ.get("WOSTEP", "6"))
KSPLIT = int(os.environ.get("KSPLIT", "4"))
X = set(os.environ.get("X", "").split(","))
CLRCONV = "clrconv" in X


def f2u(x):
    return struct.unpack("<I", struct.pack("<f", x))[0]


def hx(x):
    return "0x%08x" % (x & 0xFFFFFFFF)


LOG2E = 1.4426950408889634
LOG2E_HI = struct.unpack("<f", struct.pack("<f", LOG2E))[0]
LOG2E_LO = LOG2E - LOG2E_HI
LN2 = 0.6931471805599453
INV2PI = 0.15915494309189535

S_WS, S_X, S_W, S_WO, S_OUT, S_DBG = 4, 8, 12, 16, 20, 24
sW, sWQ, sRB, sHG, sQ, sTY, sLAY = "s28", "s29", "s30", "s31", "s32", "s33", "s34"
sO, sXQ, sST = "s35", "s36", "s37"
sD0, sD1, sD2, sD3 = "s56", "s57", "s58", "s59"


def srd(e, d, lo, hi, nbytes):
    e(f"s_mov_b32 s{d}, s{lo}")
    e(f"s_mov_b32 s{d+1}, s{hi}")
    e(f"s_mov_b32 s{d+2}, {hx(nbytes)}")
    e(f"s_mov_b32 s{d+3}, 0x00020000")


def R(base, n=4):
    return f"v[{base}:{base+n-1}]"


def SR(base, n=4):
    return f"s[{base}:{base+n-1}]"


class Stamper:
    def __init__(self, e):
        self.e, self.slot, self.pend = e, 0, []

    def stamp(self, idx):
        if not STAMPS:
            return
        if len(self.pend) >= 15:
            self.flush()
        r = 70 + 2 * len(self.pend)
        self.e(f"s_memtime s[{r}:{r+1}]")
        self.pend.append((r, idx))

    def flush(self, add_layer=0):
        if not STAMPS or not self.pend:
            return
        self.e("s_waitcnt lgkmcnt(0)")
        for r, idx in self.pend:
            if isinstance(idx, tuple):
                self.e(f"s_mul_i32 s100, {sLAY}, {idx[1]}")
                self.e(f"s_add_u32 m0, s100, {idx[0]}")
                self.e(f"v_writelane_b32 v255, s{r}, m0")
            else:
                self.e(f"v_writelane_b32 v255, s{r}, {idx}")
        self.pend = []

    def dump(self):
        if not STAMPS:
            return
        e = self.e
        self.flush()
        e("s_waitcnt vmcnt(0)")
        e("s_memtime s[70:71]")
        e("s_memrealtime s[72:73]")
        e("s_waitcnt lgkmcnt(0)")
        e("v_writelane_b32 v255, s70, 62")
        e("v_writelane_b32 v255, s72, 63")
        e(f"s_add_u32 s72, s{S_WS}, {hx(WS_DBG)}")
        e(f"s_addc_u32 s73, s{S_WS+1}, 0")
        e("s_mov_b32 s74, 0x100000")
        e("s_mov_b32 s75, 0x00020000")
        e("s_lshl_b32 s76, s2, 3")
        e(f"s_add_u32 s76, s76, {sW}")
        e("s_lshl_b32 s76, s76, 8")
        e("v_lshlrev_b32 v2, 2, v1")
        e("buffer_store_dword v255, v2, s[72:75], s76 offen")


class Cnt:
    def __init__(self, e, name, mx):
        self.e, self.name, self.mx = e, name, mx
        self.n, self.done, self.tags = 0, 0, {}

    def op(self, text, tag=None):
        self.e(text)
        self.n += 1
        if tag is not None:
            self.tags[tag] = self.n

    def phantom(self, tag):
        self.n += 1
        self.tags[tag] = self.n

    def need(self, *tags):
        k = max([self.tags[t] for t in tags if t in self.tags] + [0])
        if k > self.done:
            left = self.n - k
            self.e(f"s_waitcnt {self.name}({min(left, self.mx)})")
            self.done = k if left <= self.mx else self.n - self.mx

    def all(self):
        if self.done < self.n:
            self.e(f"s_waitcnt {self.name}(0)")
        self.done = self.n

    def reset(self):
        self.n = self.done = 0
        self.tags = {}


def run(e, ops):
    for op in ops:
        op() if callable(op) else e(op)


def weave(e, main, side):
    side = list(side)
    n = len(main)
    for i, m in enumerate(main):
        m() if callable(m) else e(m)
        take = -(-len(side) // (n - i))
        for _ in range(take):
            op = side.pop(0)
            op() if callable(op) else e(op)
    run(e, side)


def gswap(regs, tmps, op):
    out = []
    for sw in ("v_permlane16_swap_b32", "v_permlane32_swap_b32"):
        out += [f"v_mov_b32 {t}, {r}" for r, t in zip(regs, tmps)]
        out += [f"{sw} {r}, {t}" for r, t in zip(regs, tmps)]
        out += [f"{op} {r}, {r}, {t}" for r, t in zip(regs, tmps)]
    return out


def kgen(KP, KT, lg, vm):
    ACC = KP
    pa, pb, pwr, pwi, x0, x1, x2, xc, amax, lw = [f"v{KP+12+j}" for j in range(10)]
    T = lambda j: f"v{KT+j}"
    bc = lambda m: f"row_newbcast:{m} row_mask:0xf bank_mask:0xf"
    P0, P1 = [], []
    P0 += [f"v_and_b32 {T(8)}, 15, v1",
           f"v_lshlrev_b32 {T(9)}, 3, {T(8)}", f"v_cvt_f32_u32 {xc}, {T(9)}",
           f"v_lshlrev_b32 {T(9)}, 7, {T(8)}", f"v_add_u32 {T(9)}, 1024, {T(9)}", f"v_cvt_f32_u32 {x2}, {T(9)}",
           f"v_lshrrev_b32 {T(9)}, 3, {T(8)}", f"v_and_b32 {T(10)}, 7, {T(8)}",
           f"v_lshl_add_u32 {T(9)}, {T(9)}, 7, {T(10)}", f"v_cvt_f32_u32 {x0}, {T(9)}",
           f"v_lshrrev_b32 {T(9)}, 2, {T(8)}", f"v_and_b32 {T(10)}, 3, {T(8)}",
           f"v_lshl_add_u32 {T(9)}, {T(9)}, 6, {T(10)}", f"v_add_u32 {T(9)}, 128, {T(9)}",
           f"v_bfe_u32 {T(10)}, {T(8)}, 1, 2", f"v_and_b32 {T(11)}, 1, {T(8)}",
           f"v_lshl_add_u32 {T(10)}, {T(10)}, 5, {T(11)}", f"v_add_u32 {T(10)}, 128, {T(10)}",
           f"v_lshlrev_b32 {T(10)}, 1, {T(10)}",
           f"v_cmp_gt_u32 s[44:45], 8, {T(8)}",
           f"v_cndmask_b32 {T(9)}, {T(10)}, {T(9)}, s[44:45]",
           f"v_cvt_f32_u32 {x1}, {T(9)}", f"v_add_f32 {x1}, {x1}, {x1}"]
    dt, t0, t1, t2 = T(8), T(9), T(10), T(11)
    P1 += ["s_waitcnt lgkmcnt(0)",
           f"s_lshr_b32 s44, {sW}, 2", "s_lshl_b32 s44, s44, 4", "s_lshr_b32 s44, s68, s44", "s_lshl_b32 s44, s44, 16",
           f"v_mov_b32 {t0}, s44",
           f"v_mul_f32 {dt}, {hx(f2u(LOG2E_HI))}, {t0}",
           f"v_mov_b32 {t2}, {hx(f2u(LOG2E_HI))}",
           f"v_fma_f32 {t1}, {t0}, {t2}, -{dt}",
           f"v_mov_b32 {t2}, {hx(f2u(LOG2E_LO))}",
           f"v_fma_f32 {t1}, {t0}, {t2}, {t1}",
           f"v_exp_f32 {dt}, {dt}",
           f"v_mul_f32 {t1}, {hx(f2u(LN2))}, {t1}",
           f"v_fma_f32 {dt}, {dt}, {t1}, {dt}",
           f"v_cvt_pk_bf16_f32 {dt}, {dt}, {dt}",
           f"v_lshlrev_b32 {dt}, 16, {dt}",
           lambda: vm.need("prm")]
    P1 += [f"v_mul_f32 {T(j)}, {dt}, {T(j)}" for j in range(4)]
    P1 += [f"v_mul_f32 {pa}, {hx(f2u(LOG2E_HI))}, {T(0)}", f"v_mul_f32 {pb}, {hx(f2u(INV2PI))}, {T(1)}",
           f"v_mul_f32 {pwr}, {T(4)}, {T(2)}", f"v_mul_f32 {pwi}, {T(4)}, {T(3)}",
           f"v_fma_f32 {pwr}, -{T(5)}, {T(3)}, {pwr}", f"v_fma_f32 {pwi}, {T(5)}, {T(2)}, {pwi}",
           f"v_mov_b32 {lw}, {hx(f2u(1e-37))}", f"v_mov_b32 {amax}, {pa}",
           f"v_max3_f32 {lw}, abs({pwr}), abs({pwi}), {lw}"]
    for r in (1, 2, 4):
        P1 += [f"v_max_f32_dpp {q}, {q}, {q} row_ror:{r} row_mask:0xf bank_mask:0xf" for q in (amax, lw)]
    P1 += gswap([amax, lw], [t0, t1], "v_max_f32")
    P1 += [f"v_frexp_exp_i32_f32 {t0}, {lw}", f"v_sub_f32 {pa}, {pa}, {amax}", f"v_sub_u32 {t1}, 0, {t0}",
           f"v_cvt_f32_i32 {lw}, {t0}", f"v_ldexp_f32 {pwr}, {pwr}, {t1}", f"v_ldexp_f32 {pwi}, {pwi}, {t1}"]

    MG, SN, CS, WR, WI, PKB, PKA = 0, 4, 8, 12, 16, 20, 24

    def polar(ks, x):
        out = []
        for e_ in range(4):
            out += [f"v_mul_f32_dpp {T(MG+e_)}, {pa}, {x} {bc(4*ks+e_)}", f"v_mul_f32_dpp {T(CS+e_)}, {pb}, {x} {bc(4*ks+e_)}"]
        for e_ in range(4):
            out += [f"v_exp_f32 {T(MG+e_)}, {T(MG+e_)}", f"v_fract_f32 {T(CS+e_)}, {T(CS+e_)}"]
        for e_ in range(4):
            out += [f"v_sin_f32 {T(SN+e_)}, {T(CS+e_)}", f"v_cos_f32 {T(CS+e_)}, {T(CS+e_)}"]
        return out

    def kstep(ks):
        B = polar(ks, xc)
        for e_ in range(4):
            B += [f"v_mul_f32_dpp {T(WR+e_)}, {pwr}, {T(MG+e_)} {bc(4*ks+e_)}",
                  f"v_mul_f32_dpp {T(WI+e_)}, {pwi}, {T(MG+e_)} {bc(4*ks+e_)}"]
        for e_ in range(4):
            B += [f"v_mul_f32 {T(MG+e_)}, {T(WI+e_)}, {T(SN+e_)}", f"v_mul_f32 {T(WI+e_)}, {T(WI+e_)}, {T(CS+e_)}"]
        if "mix" in X:
            B += [f"v_fma_mixlo_f16 {T(PKB+e_)}, {T(WR+e_)}, {T(CS+e_)}, -{T(MG+e_)}" for e_ in range(4)]
            B += [f"v_fma_mixhi_f16 {T(PKB+e_)}, -{T(WR+e_)}, {T(SN+e_)}, -{T(WI+e_)}" for e_ in range(4)]
        else:
            for e_ in range(4):
                B += [f"v_fma_f32 {T(MG+e_)}, {T(WR+e_)}, {T(CS+e_)}, -{T(MG+e_)}",
                      f"v_fma_f32 {T(WI+e_)}, -{T(WR+e_)}, {T(SN+e_)}, -{T(WI+e_)}"]
            B += [f"v_cvt_pk_f16_f32 {T(PKB+e_)}, {T(MG+e_)}, {T(WI+e_)}" for e_ in range(4)]
        parts = [B]
        for j, x in enumerate((x0, x1, x2)):
            pk = PKA + 4 * (j & 1)
            A = polar(ks, x)
            if "mix" in X:
                A += [f"v_fma_mixlo_f16 {T(pk+e_)}, {T(MG+e_)}, {T(CS+e_)}, 0" for e_ in range(4)]
                A += [f"v_fma_mixhi_f16 {T(pk+e_)}, {T(MG+e_)}, {T(SN+e_)}, 0" for e_ in range(4)]
            else:
                for e_ in range(4):
                    A += [f"v_mul_f32 {T(CS+e_)}, {T(MG+e_)}, {T(CS+e_)}", f"v_mul_f32 {T(SN+e_)}, {T(MG+e_)}, {T(SN+e_)}"]
                A += [f"v_cvt_pk_f16_f32 {T(pk+e_)}, {T(CS+e_)}, {T(SN+e_)}" for e_ in range(4)]
            A += [f"v_mfma_f32_16x16x32_f16 {R(ACC+4*j)}, {R(KT+pk)}, {R(KT+PKB)}, {'0' if ks == 0 else R(ACC+4*j)}"]
            parts.append(A)
        return parts
    K0 = kstep(0)
    K1 = kstep(1)
    T = lambda j: f"v{KT+16+j}" if j < 12 else f"v{KT+j-12}"
    g = T(12)
    U = [f"v_lshrrev_b32 {g}, 4, v1", f"v_and_b32 {T(13)}, 15, v1",
         f"v_lshrrev_b32 {T(14)}, 5, v1", f"v_and_b32 {T(15)}, 1, {g}",
         f"v_lshl_add_u32 {T(14)}, {T(14)}, 5, {T(15)}", f"v_lshlrev_b32 {T(14)}, 2, {T(14)}",
         f"v_lshl_add_u32 {T(14)}, {T(13)}, 3, {T(14)}",
         f"s_mul_i32 s46, {sW}, {TAPCH}", f"s_add_u32 s46, s46, {L_PART}",
         f"v_cvt_f32_u32 {T(0)}, {T(14)}", f"v_lshl_add_u32 {x0}, {T(14)}, 2, s46",
         f"v_lshlrev_b32 {T(14)}, 7, {g}", f"v_add_u32 {T(14)}, 256, {T(14)}", f"v_lshlrev_b32 {T(15)}, 8, {g}",
         f"v_max_u32 {T(14)}, {T(14)}, {T(15)}", f"v_cvt_f32_u32 {T(4)}, {T(14)}", f"v_add_f32 {T(4)}, {T(4)}, {xc}",
         f"v_lshlrev_b32 {T(14)}, 9, {g}", f"v_add_u32 {T(14)}, 1024, {T(14)}", f"v_cvt_f32_u32 {T(8)}, {T(14)}",
         f"v_add_f32 {T(8)}, {T(8)}, {xc}",
         f"v_cmp_gt_u32 s[44:45], 32, v1", "s_mov_b32 s47, 0x43000000",
         f"v_mov_b32 {T(16)}, 4.0", f"v_mov_b32 {T(17)}, s47",
         f"v_cndmask_b32 {T(17)}, {T(17)}, {T(16)}, s[44:45]", f"v_cndmask_b32 {T(16)}, {T(16)}, 2.0, s[44:45]",
         f"v_add_u32 {x2}, s46, {T(15)}", f"v_lshlrev_b32 {T(14)}, 3, {T(13)}", f"v_lshlrev_b32 {T(18)}, 4, {T(13)}",
         f"v_cndmask_b32 {T(14)}, {T(14)}, {T(18)}, s[44:45]", f"v_add_u32 {x1}, {x2}, {T(14)}",
         f"v_mov_b32 {T(18)}, 128", f"v_cndmask_b32 {T(18)}, {T(18)}, 8, s[44:45]", f"v_add_u32 {pb}, {x1}, {T(18)}",
         f"v_lshl_add_u32 {x2}, {T(13)}, 2, {x2}",
         f"v_mul_f32 {T(18)}, s47, {amax}"]
    U += [f"v_fma_f32 {T(4*j)}, {T(4*j)}, {amax}, {lw}" for j in range(3)]
    U += [f"v_add_f32 {T(1)}, {T(0)}, {amax}", f"v_fma_f32 {T(2)}, 2.0, {amax}, {T(0)}",
          f"v_fma_f32 {T(5)}, {T(16)}, {amax}, {T(4)}", f"v_fma_f32 {T(6)}, {T(17)}, {amax}, {T(4)}",
          f"v_add_f32 {T(9)}, {T(8)}, {T(18)}", f"v_fma_f32 {T(10)}, 2.0, {T(18)}, {T(8)}",
          f"v_add_f32 {T(3)}, {T(2)}, {amax}", f"v_fma_f32 {T(7)}, {T(16)}, {amax}, {T(6)}",
          f"v_add_f32 {T(11)}, {T(10)}, {T(18)}"]
    h = len(U)
    U += [f"v_exp_f32 {T(j)}, {T(j)}" for j in range(12)]
    U += [f"v_mul_f32 v{ACC+j}, v{ACC+j}, {T(j)}" for j in range(12)]

    def WRT():
        lg.op(f"ds_write_b128 {x0}, {R(ACC)}")
        lg.op(f"ds_write_b64 {x1}, v[{ACC+4}:{ACC+5}] offset:1024")
        lg.op(f"ds_write_b64 {pb}, v[{ACC+6}:{ACC+7}] offset:1024")
        lg.e("s_mov_b32 exec_hi, 1")
        lg.op(f"ds_write_b32 {x2}, v{ACC+8} offset:2048")
        lg.e("s_mov_b32 exec_hi, 0")
        for e_ in range(1, 4):
            lg.op(f"ds_write_b32 {x2}, v{ACC+8+e_} offset:{2048+64*e_}")
        lg.e("s_mov_b32 exec_hi, -1")
    return P0, P1, K0, K1, [U[:h], U[h:]], WRT


MF = "v_mfma_f32_16x16x32_bf16"


def flag_addr(e, dst, t):
    e(f"v_lshrrev_b32 v{dst}, 1, v1")
    e(f"v_lshlrev_b32 v{dst}, 7, v{dst}")
    e(f"v_and_b32 v{t}, 1, v1")
    e(f"v_lshl_add_u32 v{dst}, v{t}, 4, v{dst}")
    e(f"v_add_u32 v{dst}, {hx(WS_FL)}, v{dst}")


def flag_load(e, vt, grp, sc=" sc1"):
    e(f"s_cmp_eq_u32 {sW}, 0")
    e(f"s_cselect_b64 exec, {'s[42:43]' if grp else '-1'}, 0")
    if grp:
        e(f"buffer_load_dword v{vt}, v{vt+4}, {SR(S_WS)}, s51 offen sc1")
    else:
        e(f"buffer_load_dwordx4 {R(vt)}, v11, {SR(S_WS)}, s51 offen{sc}")
    e("s_mov_b64 exec, -1")


def flag_first(e, vt, grp):
    if grp:
        e("s_lshr_b32 s40, s2, 6")
        e("s_lshl_b32 s40, s40, 8")
        e("s_and_b32 s41, s2, 7")
        e("s_add_u32 s40, s40, s41")
        e("s_lshl_b32 s40, s40, 2")
        e(f"s_add_u32 s40, s40, {hx(WS_FL)}")
        e(f"v_lshl_add_u32 v{vt+4}, v1, 7, s40")
        e("s_mov_b64 s[42:43], 0xff")
    else:
        flag_addr(e, 11, vt)
    for r in range(1 if grp else 4):
        e(f"v_mov_b32 v{vt+r}, -1")
    e(f"s_lshl_b32 s51, {sLAY}, 12")
    flag_load(e, vt, grp, "" if "flagsc" not in X else " sc1")


def flag_publish(e, vm, v, lay):
    e("s_lshr_b32 s38, s2, 3")
    e("s_lshl_b32 s38, s38, 5")
    e("s_and_b32 s39, s2, 7")
    e("s_add_u32 s38, s38, s39")
    e("s_lshl_b32 s38, s38, 2")
    e(f"s_add_u32 s38, s38, {hx(WS_FL + 4096 * lay)}")
    e(f"v_mov_b32 v{v}, 1")
    vm.op(f"buffer_store_dword v{v}, off, {SR(S_WS)}, s38 sc1")


def flag_test(e, vt, grp):
    if not grp:
        e(f"v_and_b32 v{vt}, v{vt}, v{vt+1}")
        e(f"v_and_b32 v{vt+2}, v{vt+2}, v{vt+3}")
        e(f"v_and_b32 v{vt}, v{vt}, v{vt+2}")
    e(f"v_cmp_eq_u32 vcc, 0, v{vt}")


def check_flags(e, lab, vt, grp):
    flag_test(e, vt, grp)
    e(f"s_cbranch_vccz {lab}_x")
    e("s_mov_b32 s38, 0")
    if grp:
        e("s_mov_b64 s[46:47], s[42:43]")
        e("s_mov_b64 s[42:43], 0xff")
    e.loop_begin(lab)
    e("s_sleep 4")
    flag_load(e, vt, grp)
    e("s_add_u32 s38, s38, 1")
    e("s_waitcnt vmcnt(0)")
    flag_test(e, vt, grp)
    e(f"s_cmp_gt_u32 s38, {SPIN}")
    e(f"s_cbranch_scc1 {lab}_y")
    e.loop_end(f"s_cbranch_vccnz {lab}", lab)
    e.label(lab + "_y")
    if grp:
        e("s_mov_b64 s[42:43], s[46:47]")
    e.settle()
    e.label(lab + "_x")


def sentinel_check(e, regs, tmp):
    regs = list(regs)
    cur = regs.pop(0)
    while regs:
        if len(regs) >= 2:
            e(f"v_max3_u32 v{tmp}, v{cur}, v{regs[0]}, v{regs[1]}")
            regs = regs[2:]
        else:
            e(f"v_max_u32 v{tmp}, v{cur}, v{regs.pop(0)}")
        cur = tmp
    e(f"v_cmp_eq_u32 vcc, -1, v{cur}")


def poll_loop(e, lab, loads, regs, tmp, first_extra=None):
    e("s_mov_b32 s38, 0")
    e.loop_begin(lab)
    for ld in loads:
        e(ld)
    if first_extra:
        first_extra()
    e("s_add_u32 s38, s38, 1")
    e("s_waitcnt vmcnt(0)")
    sentinel_check(e, regs, tmp)
    e(f"s_cmp_gt_u32 s38, {SPIN}")
    e(f"s_cbranch_scc1 {lab}_x")
    e.loop_end(f"s_cbranch_vccnz {lab}", lab)
    e.label(lab + "_x")


KP0, KT0, CLR0 = 92, 216, 208


def x_issue(e, vm, j, T, tag):
    e(f"s_lshl_b32 m0, {sW}, 10")
    e(f"s_add_u32 m0, m0, {8192*j + 16384*T}")
    e(f"s_add_u32 s38, s3, {512*j + 16384*max(T-1, 0)}")
    if T == 0:
        e(f"s_bitcmp1_b32 {sW}, 0")
        e("s_cselect_b32 exec_lo, -1, 0xffffff00")
    vm.op(f"buffer_load_dwordx4 {'v5' if T else 'v6'}, {SR(S_X)}, s38 offen lds", tag)
    if T == 0:
        e("s_mov_b32 exec_lo, -1")


def touch(e, vm, what, t):
    e("s_lshr_b32 s39, s2, 3")
    e(f"v_lshlrev_b32 v{t}, 7, v1")
    if what == "wo":
        e("s_lshl_b32 s38, s39, 2")
        e(f"s_add_u32 s38, s38, {sWQ}")
        e("s_lshl_b32 s38, s38, 12")
        e("s_mov_b32 exec_hi, 0")
        vm.op(f"buffer_load_dword v{t+1}, v{t}, {SR(S_WO)}, s38 offen")
        e("s_mov_b32 exec_hi, -1")
    elif what == "W":
        e("s_lshl_b32 s38, s39, 2")
        e(f"s_add_u32 s38, s38, {sWQ}")
        e("s_mul_i32 s38, s38, 7680")
        e(f"s_add_u32 s38, s38, {192*3072}")
        e("s_mov_b32 exec_hi, 0x0fffffff")
        vm.op(f"buffer_load_dword v{t+1}, v{t}, {SR(S_W)}, s38 offen")
        e("s_mov_b32 exec_hi, -1")
    elif what == "Wm":
        e("s_lshl_b32 s38, s2, 3")
        e(f"s_add_u32 s38, s38, {sW}")
        e("s_mul_i32 s38, s38, 768")
        e("s_mov_b64 exec, 63")
        vm.op(f"buffer_load_dword v{t+1}, v{t}, {SR(S_W)}, s38 offen")
        e("s_mov_b64 exec, -1")
    elif what == "W8":
        e("s_lshl_b32 s38, s39, 3")
        e(f"s_add_u32 s38, s38, {sW}")
        e("s_mul_i32 s38, s38, 4608")
        e(f"s_add_u32 s38, s38, {128*3072}")
        e("s_mov_b32 exec_hi, 0xf")
        vm.op(f"buffer_load_dword v{t+1}, v{t}, {SR(S_W)}, s38 offen")
        e("s_mov_b32 exec_hi, -1")
    else:
        e("s_getpc_b64 s[40:41]")
        e.label("k_pc")
        e(f"s_sub_u32 s40, s40, k_pc-{NAME}_kernel")
        e("s_subb_u32 s41, s41, 0")
        e("s_and_b32 s39, s39, 1")
        e(f"s_lshl_b32 s39, s39, 3")
        e(f"s_add_u32 s39, s39, {sW}")
        e("s_lshl_b32 s39, s39, 12")
        e(f"v_add_u32 v{t}, s39, v{t}")
        e(f"v_min_u32 v{t}, k_exit-{NAME}_kernel, v{t}")
        e("s_mov_b32 exec_hi, 0")
        vm.op(f"global_load_dword v{t+1}, v{t}, s[40:41]")
        e("s_mov_b32 exec_hi, -1")


def prologue(e, tm, lg, vm):
    e("s_cmp_ge_u32 s2, 256")
    e("s_cbranch_scc1 k_exit")
    if STAMPS:
        e("s_memrealtime s[98:99]")
    tm.stamp(0)
    e("s_load_dwordx4 s[60:63], s[0:1], 0")
    if "nocode1" not in X:
        e("s_cmp_lt_u32 s2, 8")
        e("s_cbranch_scc0 k_nocode")
        e("s_getpc_b64 s[38:39]")
        e.label("k_pc1")
        e("v_lshlrev_b32 v2, 7, v0")
        e("v_min_u32 v2, k_exit-k_pc1, v2")
        e("global_load_dword v254, v2, s[38:39]")
        e.label("k_nocode")
    e("s_setprio 1")
    e("s_load_dwordx16 s[40:55], s[0:1], 32")
    e("s_load_dwordx2 s[64:65], s[0:1], 16")
    e("s_load_dwordx4 s[56:59], s[0:1], 96")
    e("s_load_dwordx2 s[66:67], s[0:1], 112")
    e("v_lshrrev_b32 v2, 6, v0")
    e("v_and_b32 v1, 63, v0")
    e("v_lshlrev_b32 v3, 4, v0")
    e(f"v_readfirstlane_b32 {sW}, v2")
    e("s_and_b32 s38, s2, 7")
    e("s_lshr_b32 s39, s2, 3")
    e(f"s_lshl_b32 {sRB}, s38, 2")
    e(f"s_lshr_b32 {sHG}, s39, 3")
    e(f"s_add_u32 {sRB}, {sRB}, {sHG}")
    e(f"s_and_b32 {sHG}, s39, 7")
    if "hgrot" in X:
        e(f"s_xor_b32 {sHG}, {sHG}, 5")
    e(f"s_lshl_b32 {sQ}, s38, 4")
    e(f"s_lshr_b32 {sTY}, s39, 1")
    e(f"s_add_u32 {sQ}, {sQ}, {sTY}")
    e(f"s_and_b32 {sTY}, s39, 1")
    e(f"s_and_b32 {sWQ}, {sW}, 3")
    e(f"s_lshl_b32 s38, {sQ}, 1")
    e(f"s_add_u32 s38, s38, {sTY}")
    e("s_lshl_b32 s69, s38, 2")
    e("s_lshl_b32 s38, s38, 3")
    e(f"s_add_u32 s38, s38, {sW}")
    e("s_lshl_b32 s38, s38, 6")
    e("v_and_b32 v8, 7, v1")
    e("v_lshrrev_b32 v2, 4, v1")
    e("v_lshl_add_u32 v7, v8, 1, s38")
    e("v_lshl_add_u32 v7, v2, 4, v7")
    for a in range(6):
        e(f"v_mov_b32 v{KT0+a}, 0")
    e("v_lshrrev_b32 v9, 5, v1")
    e("v_bfe_u32 v10, v1, 3, 2")
    e("v_lshl_add_u32 v4, v9, 3, v10")
    e(f"s_lshr_b32 s39, {sW}, 1")
    e("s_lshl_b32 s38, s39, 4")
    e("s_lshl_b32 s3, s39, 7")
    e(f"s_and_b32 s39, {sW}, 1")
    e("s_lshl_b32 s68, s39, 2")
    e("s_add_u32 s38, s38, s68")
    e("v_add_u32 v4, s38, v4")
    e("v_mul_u32_u24 v4, 3072, v4")
    e("v_bfe_u32 v10, v1, 1, 2")
    e("v_xor_b32 v10, v10, v2")
    e("v_lshl_add_u32 v4, v10, 5, v4")
    e("v_and_b32 v10, 1, v1")
    e("v_lshl_add_u32 v4, v10, 4, v4")
    e(f"s_lshl_b32 s38, {sHG}, 7")
    e("v_add_u32 v4, s38, v4")
    e("v_xor_b32 v5, v8, v2")
    e("v_xor_b32 v5, s68, v5")
    e("v_lshlrev_b32 v5, 4, v5")
    e(f"s_lshl_b32 s38, {sRB}, 3")
    e("s_add_u32 s38, s38, s39")
    e("s_lshl_b32 s38, s38, 3")
    e("v_lshrrev_b32 v9, 3, v1")
    e("v_add_u32 v6, s38, v9")
    e("v_lshl_add_u32 v5, v6, 10, v5")
    e("v_subrev_u32 v6, 16384, v5")
    e(f"s_mov_b32 s{S_W+2}, {512 * 1536 * 2}")
    e(f"s_mov_b32 s{S_W+3}, 0x00020000")
    e(f"s_mov_b32 s{S_X+2}, {2 * MB}")
    e(f"s_mov_b32 s{S_X+3}, 0x00020000")
    e("s_waitcnt lgkmcnt(0)")
    e(f"s_or_b32 s38, s2, {sW}")
    e("s_cbranch_scc1 k_nolead")
    srd(e, S_WS, 66, 67, WS_RANGE)
    flag_addr(e, 16, 17)
    for r in range(12, 16):
        e(f"v_mov_b32 v{r}, 0")
    e(f"buffer_store_dwordx4 v[12:15], v16, {SR(S_WS)}, 0 offen sc1")
    e("v_add_u32 v17, 4096, v16")
    e(f"buffer_store_dwordx4 v[12:15], v17, {SR(S_WS)}, 0 offen sc1")
    e.label("k_nolead")
    for a in range(6):
        vm.op(f"global_load_short_d16_hi v{KT0+a}, v7, s[{40+2*a}:{41+2*a}]", "prm")
    e("s_load_dword s68, s[52:53], s69")
    e(f"s_mov_b64 s[{S_W}:{S_W+1}], s[62:63]")
    e(f"s_mov_b64 s[{S_X}:{S_X+1}], s[60:61]")
    e(f"s_mul_i32 s69, {sW}, 3072")
    e(f"s_add_u32 s69, s69, {L_RING}")
    if "noWm" not in X:
        touch(e, vm, "Wm", CLR0 + 4)
    run(e, w_issue(e, vm, 0))
    for T in range(5):
        x_issue(e, vm, 0, T, "xA")
    if "wom" in X:
        e(f"s_mov_b64 s[{S_WO}:{S_WO+1}], s[64:65]")
        e(f"s_mov_b32 s{S_WO+2}, {512 * 512 * 2}")
        e(f"s_mov_b32 s{S_WO+3}, 0x00020000")
        e("s_lshl_b32 s38, s2, 3")
        e(f"s_add_u32 s38, s38, {sW}")
        e("s_lshl_b32 s38, s38, 8")
        e("s_mov_b64 exec, 3")
        vm.op(f"buffer_load_dword v{CLR0+3}, v{CLR0+4}, {SR(S_WO)}, s38 offen")
        e("s_mov_b64 exec, -1")
    e("s_setprio 0")
    srd(e, S_WS, 66, 67, WS_RANGE)
    srd(e, S_WO, 64, 65, 512 * 512 * 2)
    srd(e, S_OUT, 56, 57, 2 * MB)
    srd(e, S_DBG, 58, 59, 256)
    e(f"s_lshl_b32 s38, {sQ}, 3")
    e("s_load_dwordx2 s[66:67], s[54:55], s38")
    tm.stamp(1)
    if "code0" in X:
        touch(e, vm, "code", CLR0 + 6)
    e("v_lshlrev_b32 v0, 4, v1")
    e(f"s_mov_b32 {sLAY}, 0")
    e(f"s_mov_b32 {sO}, {WS_O[0]}")
    e(f"s_mov_b32 {sXQ}, {WS_XQ[0]}")
    e(f"s_mov_b32 {sST}, {WS_ST[0]}")
    if STAMPS:
        e("v_mov_b32 v255, 0")
    for r in range(12, 16):
        e(f"v_mov_b32 v{r}, 0")
    e(f"v_add_u32 v3, {L_MISC}, v3")
    e("ds_write_b128 v3, v[12:15]")
    for r in range(16, 20):
        e(f"v_mov_b32 v{r}, 0x3f803f80")
    e("v_lshlrev_b32 v9, 11, v9")
    e("v_lshl_add_u32 v9, v8, 4, v9")
    e("ds_write_b128 v9, v[16:19]")
    P0, P1, K0, K1, U, WRT = kgen(KP0, KT0, lg, vm)
    run(e, P0)

    def go():
        e(f"s_or_b32 s38, s2, {sW}")
        e("s_cbranch_scc1 k_nogo")
        e("v_mov_b32 v12, 1")
        e(f"buffer_store_dword v12, off, {SR(S_DBG)}, 0 sc1")
        e.label("k_nogo")
    i = [callable(op) for op in P1].index(True)
    P1 = P1[:i + 1] + [go] + P1[i + 1:]
    rest = (clear_set(e, vm, 0, CLR0, sW, 1) if CLR1 < 0 else []) + w_issue(e, vm, 1) + w_issue(e, vm, 2)
    if "Wpro" in X:
        rest += [lambda: touch(e, vm, "W8", CLR0 + 6)]
    if "code2" in X:
        rest += [lambda: touch(e, vm, "code", CLR0 + 6)]
    weave(e, P1 + sum(K0[:KSPLIT], []), rest)
    tm.stamp(2)


def o_piece_off(e, dst, pr, head_s, ws_off):
    e(f"s_lshl_b32 {dst}, {sHG}, 2")
    e(f"s_add_u32 {dst}, {dst}, {head_s}")
    e(f"s_lshl_b32 {dst}, {dst}, 10")
    e(f"s_lshl_b32 s41, {sRB}, 16")
    e(f"s_add_u32 {dst}, {dst}, s41")
    if isinstance(pr, str):
        e(f"s_lshl_b32 s41, {pr}, 15")
        e(f"s_add_u32 {dst}, {dst}, s41")
    e(f"s_add_u32 {dst}, {dst}, {ws_off}")


def xq_base(e, dst, ws_off):
    e(f"s_and_b32 {dst}, {sHG}, 3")
    e(f"s_lshl_b32 {dst}, {dst}, 19")
    e(f"s_lshl_b32 s41, {sRB}, 9")
    e(f"s_add_u32 {dst}, {dst}, s41")
    e(f"s_lshr_b32 s41, {sHG}, 2")
    e("s_lshl_b32 s41, s41, 8")
    e(f"s_add_u32 {dst}, {dst}, s41")
    e(f"s_add_u32 {dst}, {dst}, {ws_off}")


def st_base(e, dst, ws_off):
    e(f"s_and_b32 {dst}, {sHG}, 3")
    e(f"s_lshl_b32 {dst}, {dst}, 14")
    e(f"s_lshl_b32 s41, {sRB}, 9")
    e(f"s_add_u32 {dst}, {dst}, s41")
    e(f"s_lshr_b32 s41, {sHG}, 2")
    e("s_lshl_b32 s41, s41, 8")
    e(f"s_add_u32 {dst}, {dst}, s41")
    e(f"s_add_u32 {dst}, {dst}, {ws_off}")


def clear_set(e, vm, lay, vs, widx, per, vo=None):
    vo = vs + 4 if vo is None else vo

    def init():
        for r in range(4):
            e(f"v_mov_b32 v{vs+r}, -1")
        e(f"v_lshrrev_b32 v{vo}, 4, v1")
        e(f"v_lshlrev_b32 v{vo}, 14, v{vo}")
        e(f"v_and_b32 v{vo+1}, 15, v1")
        e(f"v_lshl_add_u32 v{vo}, v{vo+1}, 4, v{vo}")

    def o_(j):
        e(f"s_add_u32 s40, {widx}, {j}")
        e("s_lshr_b32 s42, s40, 2")
        e("s_and_b32 s43, s40, 3")
        o_piece_off(e, "s39", "s42", "s43", WS_O[lay])
        vm.op(f"buffer_store_dwordx4 {R(vs)}, v0, {SR(S_WS)}, s39 offen sc1")

    def x_(j):
        xq_base(e, "s39", WS_XQ[lay])
        e(f"s_add_u32 s40, {widx}, {j}")
        e("s_lshl_b32 s42, s40, 16")
        e("s_add_u32 s39, s39, s42")
        vm.op(f"buffer_store_dwordx4 {R(vs)}, v{vo}, {SR(S_WS)}, s39 offen sc1")

    def s_():
        st_base(e, "s39", WS_ST[lay])
        e(f"s_lshl_b32 s42, {widx}, 5")
        e("s_add_u32 s39, s39, s42")
        e(f"s_mov_b64 exec, {(1 << (2 * per)) - 1}")
        vm.op(f"buffer_store_dwordx4 {R(vs)}, v0, {SR(S_WS)}, s39 offen sc1", "clr")
        e("s_mov_b64 exec, -1")
    ops = [init]
    for j in range(per):
        ops += [lambda j=j: o_(j), lambda j=j: x_(j)]
    return ops + [s_]


def w_issue(e, vm, S):
    def one(seg):
        e(f"s_add_u32 m0, s69, {(S % 3) * RSLOT}")
        e(f"s_mov_b32 s38, {S * 196608}")
        vm.op(f"buffer_load_dwordx4 v4, {SR(S_W)}, s38 offen offset:{1024*seg} lds", ("W", S))
    return [lambda seg=seg: one(seg) for seg in range(3)]


def att1_stage(e, vm, S, side, t, gemm):
    ld = w_issue(e, vm, S + 3) if S <= 4 else []
    ld2 = [lambda T=T: x_issue(e, vm, 1, T, "xB") for T in range(5)] if S == 0 else []
    if S == TOUCH_AT and t:
        ld2 += [lambda: touch(e, vm, t[0], t[1])]
    run(e, ld)
    mix_ = []
    k = -(-len(side) // (len(ld2) + 1))
    for i in range(len(ld2) + 1):
        mix_ += side[i * k:(i + 1) * k] + ld2[i:i + 1]
    weave(e, gemm, mix_)


def ksched(K1, U, WRT):
    sides = [[] for _ in range(6)]
    for part, S in zip(K1 + U, SCHED):
        sides[S] = sides[S] + part
    sides[5] = sides[5] + [WRT]
    return sides


def vb_addr(e, dst, h):
    e(f"v_lshrrev_b32 {dst}, 5, v1")
    e(f"v_mul_u32_u24 {dst}, 6144, {dst}")
    e("v_bfe_u32 v8, v1, 2, 3")
    e(f"v_lshl_add_u32 {dst}, v8, 7, {dst}")
    e("v_bfe_u32 v8, v1, 3, 2")
    e(f"v_xor_b32 v8, {h}, v8")
    e(f"v_lshl_add_u32 {dst}, v8, 5, {dst}")
    e("v_and_b32 v8, 3, v1")
    e(f"v_lshl_add_u32 {dst}, v8, 3, {dst}")
    e(f"v_add_u32 {dst}, {L_RING}, {dst}")


def xf_addr(e, dst, t0="v8", t1="v9"):
    e(f"v_bfe_u32 {t0}, v1, 1, 3")
    e(f"v_lshrrev_b32 {t1}, 4, v1")
    e(f"v_xor_b32 {t0}, {t0}, {t1}")
    e(f"v_and_b32 {t1}, 15, v1")
    e(f"v_lshlrev_b32 {t1}, 7, {t1}")
    e(f"v_lshl_add_u32 {dst}, {t0}, 4, {t1}")


def ingest(e, lg, vm, S, vb, vb2, segs, wreg):
    need = [("W", S)] + (["xA"] if S == 0 else []) + (["xB"] if S == 4 else []) + (["clr"] if S == FLAG_AT + 1 else [])
    if S in (0, 7, 8):
        lg.all()
    else:
        lg.need(("w", 2 * S - 1))
    vm.need(*need)
    e("s_barrier")
    if S == 8:
        return
    sl = S % 3
    for kk in range(2):
        for n_, seg in enumerate(segs):
            for hi in range(2):
                r = wreg(2 * S + kk, n_) + 2 * hi
                off = kk * 12288 + hi * 3072 + seg * 1024
                b, off = (vb2, off) if sl == 2 else (vb, off + sl * RSLOT)
                lg.op(f"ds_read_b64_tr_b16 v[{r}:{r+1}], {b} offset:{off}", ("w", 2 * S + kk))


P_W, P_CSQ, P_CSK = 120, 248, 116
P_K, P_Q, P_F = 16, 32, 52


def p_wreg(s, n):
    return P_W + 8 * s + 4 * n


def p_gemm(lg, s0, s1, lay1, pre_issued=False, next_s=None):
    def reads(s):
        out = []
        for T in range(5):
            b, off = (("v3", "v11")[s & 1], (s >> 1) * 2048) if T == 4 else (("v2", "v10")[s & 1], T * 16384 + (s >> 1) * 2048)
            out.append(lambda s=s, T=T, b=b, off=off: lg.op(
                f"ds_read_b128 {R(P_F + 20*(s & 1) + 4*T)}, {b} offset:{off}", ("x", s, T)))
        return out
    ops = [] if pre_issued else reads(s0)
    e = lg.e
    for s in range(s0, s1):
        ms = []
        for T in range(5):
            for seg in (1, 0):
                if T == 0 and seg == 0 and not lay1:
                    continue
                c = (P_K + 4 * T) if seg else (P_Q + 4 * T if T else P_CSQ)

                def m(s=s, T=T, seg=seg, c=c):
                    lg.need(("x", s, T), ("w", s))
                    src = "0" if s == 0 else R(c)
                    e(f"{MF} {R(c)}, {R(p_wreg(s, seg))}, {R(P_F + 20*(s & 1) + 4*T)}, {src}")
                ms.append(m)
        nx = s + 1 if s + 1 < s1 else next_s
        side = reads(nx) if nx is not None else []
        for i, m in enumerate(ms):
            ops.append(m)
            if i >= 1 and side:
                ops.append(side.pop(0))
        ops += side
    return ops


def p_setup_att(e):
    e("v_and_b32 v10, 15, v1")
    e("v_lshrrev_b32 v11, 4, v1")
    e("v_and_b32 v8, 1, v10")
    e("v_lshl_add_u32 v9, v11, 2, v8")
    e("v_cmp_eq_u32 s[60:61], 1, v8")
    e("v_cmp_le_u32 s[62:63], v9, v10")
    e("v_add_u32 v9, 2, v9")
    e("v_cmp_le_u32 s[64:65], v9, v10")
    e("v_mov_b32 v8, 0x0c0c0100")
    e("v_mov_b32 v9, 0x01000c0c")
    e("v_mov_b32 v7, 0x0c0c0c0c")
    e("v_cndmask_b32 v8, v8, v9, s[60:61]")
    e("v_cndmask_b32 v12, v8, v7, s[62:63]")
    e("v_cndmask_b32 v14, v7, v8, s[62:63]")
    e("v_mov_b32 v8, 0x0c0c0302")
    e("v_mov_b32 v9, 0x03020c0c")
    e("v_cndmask_b32 v8, v8, v9, s[60:61]")
    e("v_cndmask_b32 v13, v8, v7, s[64:65]")
    e("v_cndmask_b32 v15, v7, v8, s[64:65]")
    e("v_and_b32 v7, 1, v10")
    e("v_lshlrev_b32 v7, 4, v7")
    e("v_lshrrev_b32 v8, 1, v10")
    e("v_add_u32 v7, v7, v8")
    e("v_and_b32 v8, 1, v11")
    e("v_lshl_add_u32 v7, v8, 3, v7")
    e("v_lshlrev_b32 v7, 4, v7")
    e("v_lshrrev_b32 v8, 1, v11")
    e("v_lshl_add_u32 v7, v8, 9, v7")
    e(f"v_lshlrev_b32 v8, 3, v10")
    e(f"v_add_u32 v8, {L_STQ}, v8")
    e(f"s_mul_i32 s38, {sW}, 2560")
    e(f"s_add_u32 s38, s38, {L_VX}")
    e("v_lshl_add_u32 v9, v1, 3, s38")


FLG2 = 112


def p_attention(e, lg, tm):
    QS, QP, S0, VP, OP = 52, 62, 72, 88, 52
    for T in range(5):
        lg.op(f"ds_read_b64 v[{QS+2*T}:{QS+2*T+1}], v8 offset:{128*T}", ("s", T))
    for T in range(5):
        lg.op(f"ds_read_b64 v[{VP+2*T}:{VP+2*T+1}], v9 offset:{512*T}", "v")
    e(f"s_cmp_eq_u32 {sRB}, 0")
    e("s_cselect_b64 s[66:67], -1, 0")
    qk = [(T, seg) for T in range(5) for seg in (1, 0) if not (T == 0 and seg == 0)]
    unit = lambda T, seg: (P_K + 4 * T) if seg else (P_Q + 4 * T)
    for T, seg in qk:
        lg.need(("s", T))
        c, cs = unit(T, seg), (P_CSK if seg else P_CSQ)
        for h in range(2):
            e(f"v_pk_fma_f32 v[{c+2*h}:{c+2*h+1}], v[{cs+2*h}:{cs+2*h+1}], v[{QS+2*T}:{QS+2*T+1}], v[{c+2*h}:{c+2*h+1}] op_sel_hi:[1,0,1] neg_lo:[0,1,0] neg_hi:[0,1,0]")
    for T, seg in qk:
        c = unit(T, seg)
        for h in range(2):
            e(f"v_pk_mul_f32 v[{c+2*h}:{c+2*h+1}], v[{c+2*h}:{c+2*h+1}], v[{QS+2*T}:{QS+2*T+1}] op_sel:[0,1] op_sel_hi:[1,1]")
    for T, seg in qk:
        c = unit(T, seg)
        d = QP + 2 * (T - 1) if seg == 0 else c
        e(f"v_cvt_pk_bf16_f32 v{d}, v{c}, v{c+1}")
        e(f"v_cvt_pk_bf16_f32 v{d+1}, v{c+2}, v{c+3}")
    if "noB1b" not in X:
        e(f"s_cmp_eq_u32 {sLAY}, 0")
        e("s_cbranch_scc0 p_b1b")
        e("s_waitcnt vmcnt(0)")
        e("s_barrier")
        e.label("p_b1b")
        e("s_nop 4")
    kp = lambda T: f"v[{P_K+4*T}:{P_K+4*T+1}]"
    TS = range(1, 5)
    for T in TS:
        q = f"v[{QP+2*(T-1)}:{QP+2*(T-1)+1}]"
        e(f"v_mfma_f32_16x16x16_bf16 {R(P_Q+4*T)}, {kp(T)}, {q}, 0")
        e(f"v_mfma_f32_16x16x16_bf16 {R(S0+4*(T-1))}, {kp(T-1)}, {q}, 0")
    e(f"v_mov_b32 v10, {hx(f2u(-4.0e9))}")
    e("s_mov_b32 s38, 0xffff0000")
    e(f"s_mov_b32 s39, {hx(f2u(0.25*LOG2E))}")
    W = lambda T: 98 + 4 * (T - 1)
    for T in TS:
        w, c1, c0 = W(T), P_Q + 4 * T, S0 + 4 * (T - 1)
        e(f"v_cndmask_b32 v{w}, v{c1}, v{c1+1}, s[60:61]")
        e(f"v_cndmask_b32 v{w+1}, v{c1+2}, v{c1+3}, s[60:61]")
        e(f"v_cndmask_b32 v{w+2}, v{c0}, v{c0+1}, s[60:61]")
        e(f"v_cndmask_b32 v{w+3}, v{c0+2}, v{c0+3}, s[60:61]")
        if T == 1:
            e(f"v_cndmask_b32 v{w+2}, v{w+2}, v10, s[66:67]")
            e(f"v_cndmask_b32 v{w+3}, v{w+3}, v10, s[66:67]")
    for T in TS:
        w = W(T)
        e(f"v_cndmask_b32 v{w}, v{w+2}, v{w}, s[62:63]")
        e(f"v_cndmask_b32 v{w+1}, v{w+3}, v{w+1}, s[64:65]")
    for T in TS:
        e(f"v_cvt_pk_bf16_f32 v{W(T)+2}, v{W(T)}, v{W(T)+1}")
    for T in TS:
        e(f"v_lshlrev_b32 v{W(T)}, 16, v{W(T)+2}")
        e(f"v_and_b32 v{W(T)+1}, s38, v{W(T)+2}")
    for T in TS:
        e(f"v_max_f32 v{W(T)+2}, v{W(T)}, v{W(T)+1}")
    flag_first(e, 16, True)
    run(e, gswap([f"v{W(T)+2}" for T in TS], [f"v{W(T)+3}" for T in TS], "v_max_f32"))
    for T in TS:
        w = W(T)
        e(f"v_sub_f32 v{w}, v{w}, v{w+2}")
        e(f"v_sub_f32 v{w+1}, v{w+1}, v{w+2}")
    for T in TS:
        w = W(T)
        e(f"v_mul_f32 v{w}, s39, v{w}")
        e(f"v_mul_f32 v{w+1}, s39, v{w+1}")
    for T in TS:
        w = W(T)
        e(f"v_exp_f32 v{w}, v{w}")
        e(f"v_exp_f32 v{w+1}, v{w+1}")
    for T in TS:
        e(f"v_add_f32 v{W(T)+2}, v{W(T)}, v{W(T)+1}")
    run(e, gswap([f"v{W(T)+2}" for T in TS], [f"v{W(T)+3}" for T in TS], "v_add_f32"))
    for T in TS:
        e(f"v_rcp_f32 v{W(T)+2}, v{W(T)+2}")
    for T in TS:
        w = W(T)
        e(f"v_mul_f32 v{w}, v{w}, v{w+2}")
        e(f"v_mul_f32 v{w+1}, v{w+1}, v{w+2}")
    for T in TS:
        e(f"v_cvt_pk_bf16_f32 v{W(T)+2}, v{W(T)}, v{W(T)+1}")
    o_piece_off(e, "s40", 0, sW, sO)
    for T in TS:
        for k in range(4):
            e(f"v_perm_b32 v{S0+4*(T-1)+k}, v{W(T)+2}, v{W(T)+2}, v{12+k}")
    lg.need("v")
    for T in TS:
        e(f"{MF} {R(P_Q+4*T)}, {R(VP+2*(T-1))}, {R(S0+4*(T-1))}, 0")
    e("s_add_u32 s42, s40, 32768")
    for T in TS:
        o_, c1 = OP + 2 * (T - 1), P_Q + 4 * T
        e(f"v_cvt_pk_bf16_f32 v{o_}, v{c1}, v{c1+1}")
        e(f"v_cvt_pk_bf16_f32 v{o_+1}, v{c1+2}, v{c1+3}")
    for pr in range(2):
        o_ = OP + 4 * pr
        e(f"v_permlane16_swap_b32 v{o_}, v{o_+2}")
        e(f"v_permlane16_swap_b32 v{o_+1}, v{o_+3}")
        e(f"v_min_u32 v{o_+3}, -2, v{o_+3}")
        e(f"buffer_store_dwordx4 {R(o_)}, v7, {SR(S_WS)}, {'s42' if pr else 's40'} offen sc1")


def tap_issue(e, lab):
    e(f"s_mul_i32 s46, {sQ}, {4*TAPCH}")
    e(f"s_add_u32 s46, s46, {WS_KT}")
    e("s_add_u32 s46, s46, s48")
    for c in range(4):
        e(f"s_add_u32 m0, s49, {c*SCRCH}")
        e(f"s_add_u32 s47, s46, {c*TAPCH}")
        e(f"buffer_load_dwordx4 v0, {SR(S_WS)}, s47 offen sc1 lds")
    e(f"s_cmp_eq_u32 {sW}, 3")
    e(f"s_cbranch_scc0 {lab}")
    for c in range(4):
        e(f"s_add_u32 m0, s49, {c*SCRCH}")
        e(f"s_add_u32 s47, s46, {c*TAPCH}")
        e(f"buffer_load_dwordx4 v0, {SR(S_WS)}, s47 offen offset:1024 sc1 lds")


def p_ogather(e, lg, tm):
    e(f"s_lshl_b32 s40, {sRB}, 16")
    e(f"s_lshr_b32 s41, {sHG}, 2")
    e("s_lshl_b32 s41, s41, 15")
    e("s_add_u32 s40, s40, s41")
    e(f"s_lshl_b32 s41, {sW}, 13")
    e("s_add_u32 s40, s40, s41")
    e(f"s_add_u32 s40, s40, {sO}")
    e("s_add_u32 s42, s40, 4096")
    e(f"s_add_u32 s41, s41, {L_OT}")
    e("v_add_u32 v10, s41, v0")
    e(f"s_lshl_b32 s48, {sW}, 3")
    e("s_lshr_b32 s48, 0x00050708, s48")
    e("s_and_b32 s48, s48, 15")
    e("s_lshl_b32 s48, s48, 8")
    e(f"s_mul_i32 s49, {sW}, {4*SCRCH}")
    e(f"s_add_u32 s49, s49, {L_SCR + 64}")
    e("s_waitcnt vmcnt(2)")
    check_flags(e, "p_flag1", 16, True)
    e("s_waitcnt vmcnt(0)")
    tm.stamp((8, 24))
    e("s_barrier")
    e(f"s_cmp_eq_u32 {sLAY}, 1")
    e("s_cbranch_scc0 p_tap2")
    tap_issue(e, "p_tap2")
    e.label("p_tap2")
    loads = [f"buffer_load_dwordx4 {R(16+4*j)}, v0, {SR(S_WS)}, {'s42' if j >= 4 else 's40'} offen offset:{1024*(j&3)} sc1"
             for j in range(8)]
    poll_loop(e, "p_opoll", loads, [19 + 4 * j for j in range(8)], 48)
    tm.stamp((9, 24))
    for j in range(8):
        e(f"ds_write_b128 v10, {R(16+4*j)} offset:{1024*j}")
    e("s_waitcnt lgkmcnt(0)")
    e("s_barrier")
    tm.stamp((10, 24))
    e(f"s_cmp_eq_u32 {sLAY}, 0")
    e("s_cbranch_scc0 p_tap1")
    tap_issue(e, "p_tap1")
    e.label("p_tap1")
    flag_first(e, FLG2, False)


def p_expand(e, lg, early):
    GA, V_, O_, t = 16, 28, 76, 108
    e(f"v_lshl_or_b32 v{t}, {sW}, 6, v1")
    e(f"v_lshlrev_b32 v{t}, 3, v{t}")
    e(f"v_sub_u32 v{t}, 2047, v{t}")
    e("s_sub_u32 s43, s49, s48")
    e(f"s_sub_u32 s41, s43, {4*(17152-128)}")
    for r in range(4):
        e(f"v_mov_b32 v{O_+r}, 0")
    e(f"v_mul_u32_u24 v{t+1}, {SCRCH}, v1")
    e(f"v_add3_u32 v{t+1}, v{t+1}, s43, -16")
    e(f"v_lshrrev_b32 v{t+2}, 1, v1")
    e(f"v_mul_u32_u24 v{t+2}, {KCOPY}, v{t+2}")
    e(f"v_and_b32 v{t+3}, 1, v1")
    e(f"v_lshl_add_u32 v{t+2}, v{t+3}, 4, v{t+2}")
    e(f"s_cmp_eq_u32 {sW}, 3")
    e("s_cselect_b64 exec, 15, 0")
    e(f"ds_write_b128 v{t+1}, {R(O_)}")
    e("s_cselect_b32 exec_lo, 0, -1")
    e(f"ds_write_b128 v{t+2}, {R(O_)} offset:{L_KT + 4096}")
    e("s_mov_b64 exec, -1")
    for x in range(0, 11, 2):
        xs = [x] + ([x + 1] if x < 10 else [])
        for y in xs:
            e(f"v_subrev_u32 v{V_+y}, {y}, v{t}")
            e(f"v_cvt_f32_i32 v{O_+4+(y&1)}, v{V_+y}")
        e(f"v_cvt_pk_bf16_f32 v{O_+6}, v{O_+4}, v{O_+5}")
        e(f"v_and_b32 v{O_+4}, 0xffff, v{O_+6}")
        e(f"v_lshrrev_b32 v{O_+5}, 16, v{O_+6}")
        for y in xs:
            e(f"v_lshl_add_u32 v{GA+y}, v{O_+4+(y&1)}, 2, s41")
            e(f"v_lshl_add_u32 v{O_+7}, v{V_+y}, 2, s43")
            e(f"v_cmp_gt_i32 vcc, 0x80, v{V_+y}")
            e(f"v_cndmask_b32 v{GA+y}, v{GA+y}, v{O_+7}, vcc")
    e(f"s_lshl_b32 s41, {sW}, 10")
    e(f"v_add_u32 v{t}, s41, v0")
    e("s_waitcnt vmcnt(1) lgkmcnt(0)")
    lg.reset()
    for c in range(4):
        for x in range(11):
            lg.op(f"ds_read_b32 v{V_+12*c+x}, v{GA+x} offset:{c*SCRCH}", (c, x))
    for c in range(4):
        o = O_ + 16 * (c & 1)
        for sg in range(4):
            for j in range(4):
                x = 2 * j + 3 - sg
                lg.need((c, x + 1))
                e(f"v_cvt_pk_bf16_f32 v{o+4*sg+j}, v{V_+12*c+x}, v{V_+12*c+x+1}")
            lg.op(f"ds_write_b128 v{t}, {R(o+4*sg)} offset:{L_KT + c*KCH + sg*KCOPY}", ("w", c))
        if c >= 1:
            lg.need(("w", c - 1))
        if c == EARLY_AT:
            run(e, early)


def p_conv(e, lg, tm):
    X, Stt, Z, T_ = 16, 32, 64, 96
    def loads(k, first=False):
        b = Stt + 16 * (k & 1)
        out = [f"s_add_u32 s40, s45, {4096*k}",
               f"buffer_load_dwordx4 {R(X+4*k)}, v4, {SR(S_WS)}, s40 offen sc1",
               f"s_add_u32 s40, {sST}, {4096*k}"]
        for cg in range(4):
            out.append(f"buffer_load_dwordx4 {R(b+4*cg)}, v4, {SR(S_WS)}, s40 offen{'' if first and k >= PLAIN else ' sc1'}")
            if cg < 3:
                out.append("s_add_u32 s40, s40, 16384")
        return out

    e(f"v_lshl_or_b32 v10, {sW}, 6, v1")
    e("v_lshlrev_b32 v4, 4, v10")
    e(f"s_lshl_b32 s45, {sQ}, 14")
    e(f"s_add_u32 s45, s45, {sXQ}")
    p_expand(e, lg, [])
    e("s_waitcnt vmcnt(0)")
    check_flags(e, "p_flag2", FLG2, False)
    e(f"v_lshl_add_u32 v5, v10, 2, 0")
    e(f"v_add_u32 v5, {L_U + UPAD}, v5")
    e("v_and_b32 v6, 127, v10")
    e("v_lshlrev_b32 v6, 2, v6")
    e(f"v_add_u32 v6, {L_Y}, v6")
    e(f"s_cmp_eq_u32 {sLAY}, 0")
    e("s_cbranch_scc0 p_oaddr2")
    e("v_lshrrev_b32 v11, 3, v10")
    e("v_lshlrev_b32 v11, 14, v11")
    e("v_and_b32 v10, 7, v10")
    e("v_lshl_add_u32 v11, v10, 4, v11")
    e(f"s_lshl_b32 s44, {sQ}, 7")
    e(f"s_add_u32 s44, s44, {WS_X2}")
    e("s_branch p_oaddr3")
    e.label("p_oaddr2")
    e("v_lshlrev_b32 v11, 11, v10")
    e(f"s_lshl_b32 s44, {sQ}, 3")
    e.label("p_oaddr3")
    e(f"s_lshr_b32 s46, {sW}, 1")
    e(f"s_xor_b32 s46, s46, {sTY}")
    e(f"s_lshr_b32 s47, {sW}, 1")
    e(f"s_and_b32 s47, s47, {sTY}")
    e("s_mov_b32 s48, 0xffff0000")
    e(f"s_mov_b32 s49, {hx(f2u(1.0/512))}")
    e(f"v_mov_b32 v{T_+19}, {hx(f2u(1e-5))}")
    for r in range(4):
        e(f"v_mov_b32 v{T_+r}, 0")
    e(f"s_mul_i32 s41, {sW}, {USTR}")
    e(f"s_add_u32 s41, s41, {L_U}")
    e(f"v_add_u32 v10, s41, v0")
    e("s_waitcnt lgkmcnt(0)")
    tm.stamp((11, 24))
    e("s_barrier")
    e("s_mov_b32 exec_hi, 0")
    e(f"ds_write_b128 v10, {R(T_)}")
    e("s_mov_b32 exec_hi, -1")

    def ready(k, vmn):
        b = Stt + 16 * (k & 1)
        regs = [X + 4 * k + 3] + [b + 4 * cg + 3 for cg in range(4)]
        if vmn is not None:
            e(f"s_waitcnt vmcnt({vmn})")
        sentinel_check(e, regs, T_)
        e(f"s_cbranch_vccz p_rdy{k}")
        poll_loop(e, f"p_xpoll{k}", loads(k), regs, T_)
        e.settle()
        e.label(f"p_rdy{k}")

    def norm(k):
        b, x, z = Stt + 16 * (k & 1), X + 4 * k, Z + 8 * k
        for j in range(4):
            e(f"v_add_f32 v{b+j}, v{b+j}, v{b+4+j}")
            e(f"v_add_f32 v{b+8+j}, v{b+8+j}, v{b+12+j}")
        for j in range(4):
            e(f"v_add_f32 v{b+j}, v{b+j}, v{b+8+j}")
        for r in range(2):
            e(f"v_mul_f32 v{b+2*r}, s49, v{b+2*r}")
            e(f"v_fma_f32 v{b+2*r+1}, v{b+2*r+1}, s49, v{T_+19}")
        for r in range(2):
            e(f"v_fma_f32 v{b+2*r+1}, -v{b+2*r}, v{b+2*r}, v{b+2*r+1}")
        for r in range(2):
            e(f"v_max_f32 v{b+2*r+1}, v{T_+19}, v{b+2*r+1}")
        for r in range(2):
            e(f"v_sqrt_f32 v{b+2*r+1}, v{b+2*r+1}")
        for j in range(4):
            e(f"v_lshlrev_b32 v{z+2*j}, 16, v{x+j}")
            e(f"v_and_b32 v{z+2*j+1}, s48, v{x+j}")
        e(f"v_cvt_pk_bf16_f32 v{b+4}, v{b+1}, v{b+3}")
        e(f"v_lshlrev_b32 v{b+1}, 16, v{b+4}")
        e(f"v_and_b32 v{b+3}, s48, v{b+4}")
        for r in range(2):
            e(f"v_rcp_f32 v{b+2*r+1}, v{b+2*r+1}")
        for j in range(8):
            e(f"v_sub_f32 v{T_+j}, v{z+j}, v{b+2*(j>>2)}")
        for j in range(8):
            e(f"v_mul_f32 v{T_+j}, v{T_+j}, v{b+2*(j>>2)+1}")
        for c in range(4):
            e(f"v_cvt_pk_bf16_f32 v{b+4+c}, v{T_+c}, v{T_+4+c}")
        for c in range(4):
            e(f"ds_write_b32 v5, v{b+4+c} offset:{USTR*c + 1024*k}")
        for c in range(4):
            e(f"v_lshlrev_b32 v{T_+c}, 16, v{b+4+c}")
            e(f"v_and_b32 v{T_+4+c}, s48, v{b+4+c}")
        for j in range(8):
            e(f"v_fma_f32 v{z+j}, v{T_+j}, s{56+(j&3)}, v{z+j}")

    def epi(k):
        z = Z + 8 * k
        e(f"s_xor_b32 s40, s46, {k & 1}")
        e("s_bitcmp1_b32 s40, 0")
        e(f"s_cbranch_scc1 p_noepi{k}")
        for c in range(4):
            e(f"ds_read_b32 v{T_+8+c}, v6 offset:{2048*k + 512*c}")
        e(f"s_add_u32 s40, s44, {k*524288}")
        e("s_waitcnt lgkmcnt(0)")
        for c in range(4):
            e(f"v_lshlrev_b32 v{T_+c}, 16, v{T_+8+c}")
            e(f"v_and_b32 v{T_+4+c}, s48, v{T_+8+c}")
        for j in range(8):
            e(f"v_add_f32 v{T_+j}, v{T_+j}, v{z+j}")
        for j in range(4):
            e(f"v_cvt_pk_bf16_f32 v{T_+8+j}, v{T_+2*j}, v{T_+2*j+1}")
        e(f"s_cmp_eq_u32 {sLAY}, 0")
        e(f"s_cbranch_scc0 p_epo{k}")
        e(f"v_min_u32 v{T_+11}, -2, v{T_+11}")
        e(f"buffer_store_dwordx4 {R(T_+8)}, v11, {SR(S_WS)}, s40 offen sc1")
        e(f"s_branch p_noepi{k}")
        e.label(f"p_epo{k}")
        e(f"buffer_store_dwordx2 {R(T_+8, 2)}, v11, {SR(S_OUT)}, s40 offen")
        e(f"buffer_store_dwordx2 {R(T_+10, 2)}, v11, {SR(S_OUT)}, s40 offen offset:1024")
        e.settle()
        e.label(f"p_noepi{k}")

    run(e, loads(0, True) + loads(1, True))
    ready(0, 5)
    tm.stamp((12, 24))
    norm(0)
    run(e, loads(2, True))
    e("s_waitcnt lgkmcnt(0)")
    e("s_barrier")
    tm.stamp((13, 24))
    ready(1, 5)
    norm(1)
    run(e, loads(3, True))
    e("s_waitcnt lgkmcnt(0)")
    e("s_barrier")
    tm.stamp((14, 24))
    ready(2, 5)
    norm(2)
    e("s_waitcnt vmcnt(0)")
    epi(0)
    if CLRCONV:
        e(f"s_cmp_eq_u32 {sLAY}, 0")
        e("s_cbranch_scc0 p_noclr")
        e(f"s_lshl_b32 s50, {sW}, 1")
        run(e, clear_set(e, Cnt(e, "vmcnt", 63), 1, Stt, "s50", 2))
        e.settle()
        e.label("p_noclr")
    e("s_waitcnt lgkmcnt(0)")
    e("s_barrier")
    tm.stamp((15, 24))
    ready(3, None)
    e("s_cmp_eq_u32 s47, 1")
    e("s_cbranch_scc1 p_noq3b")
    norm(3)
    e.settle()
    e.label("p_noq3b")
    epi(1)
    e("s_waitcnt lgkmcnt(0)")
    e("s_barrier")
    tm.stamp((16, 24))
    epi(2)
    e("s_barrier")
    tm.stamp((17, 24))
    epi(3)
    tm.stamp((18, 24))


def stage_x2(e, lab, B, tm):
    t = B + 40
    e(f"s_lshl_b32 s40, {sRB}, 16")
    e(f"s_lshl_b32 s41, {sW}, 10")
    e("s_add_u32 s40, s40, s41")
    e(f"s_add_u32 s40, s40, {WS_X2 - 16384}")
    e(f"s_cmp_eq_u32 {sRB}, 0")
    e("s_cselect_b32 s42, 0x7f000000, 0")
    e(f"v_add_u32 v{t}, s42, v0")
    e(f"v_and_b32 v{t+3}, 7, v1")
    e(f"s_and_b32 s43, {sW}, 1")
    e("s_lshl_b32 s43, s43, 2")
    e(f"v_lshrrev_b32 v{t+2}, 4, v1")
    e(f"v_xor_b32 v{t+2}, v{t+2}, v{t+3}")
    e(f"v_xor_b32 v{t+2}, s43, v{t+2}")
    e(f"v_lshlrev_b32 v{t+1}, 8, v{t+3}")
    e(f"v_lshl_add_u32 v{t+1}, v{t+2}, 4, v{t+1}")
    e(f"v_bfe_u32 v{t+2}, v1, 3, 1")
    e(f"v_lshl_add_u32 v{t+1}, v{t+2}, 3, v{t+1}")
    e(f"s_lshr_b32 s43, {sW}, 1")
    e("s_lshl_b32 s43, s43, 11")
    e(f"v_add_u32 v{t+1}, s43, v{t+1}")
    e(f"v_add_u32 v{t+2}, 0x10000, v{t+1}")
    e(f"v_cmp_eq_u32 s[44:45], 0, v{t+3}")
    loads = []
    for j in range(2):
        for T in range(5):
            loads.append(f"s_add_u32 s43, s40, {T*16384 + j*8192}")
            loads.append(f"buffer_load_dwordx4 {R(B+20*j+4*T)}, {'v0' if T else f'v{t}'}, {SR(S_WS)}, s43 offen sc1")
    e("s_waitcnt vmcnt(0)")
    tm.stamp(23)
    poll_loop(e, lab, loads, [B + 4 * n + 3 for n in range(10)], t + 3)
    tm.stamp(24)
    e(f"v_mov_b32 v{t+3}, 0x3f803f80")
    for j in range(2):
        for r in range(2):
            e(f"v_cndmask_b32 v{B+20*j+r}, v{B+20*j+r}, v{t+3}, s[44:45]")
    for j in range(2):
        for T in range(5):
            r = B + 20 * j + 4 * T
            a, off = (f"v{t+1}", T * 16384 + j * 8192) if T < 4 else (f"v{t+2}", j * 8192)
            e(f"ds_write_b64 {a}, v[{r}:{r+1}] offset:{off}")
            e(f"ds_write_b64 {a}, v[{r+2}:{r+3}] offset:{off + 128}")
    e("s_waitcnt lgkmcnt(0)")
    e("s_barrier")
    tm.stamp(25)


def next_layer(e):
    e(f"s_mov_b32 {sLAY}, 1")
    e(f"s_mov_b32 {sO}, {WS_O[1]}")
    e(f"s_mov_b32 {sXQ}, {WS_XQ[1]}")
    e(f"s_mov_b32 {sST}, {WS_ST[1]}")


def dskip_unpack(e):
    e("s_lshl_b32 s56, s66, 16")
    e("s_and_b32 s57, s66, 0xffff0000")
    e("s_lshl_b32 s58, s67, 16")
    e("s_and_b32 s59, s67, 0xffff0000")


def stop(e, tm, name):
    if STOP == name:
        tm.flush()
        e("s_branch k_done")


NCLR2 = 7


def gen_P(e, tm, lg, vm):
    P0, P1, K0, K1, U, WRT = kgen(KP0, KT0, lg, vm)
    xf_addr(e, "v2")
    e("v_add_u32 v3, 0x10000, v2")
    e("v_xor_b32 v10, 64, v2")
    e("v_xor_b32 v11, 64, v3")
    vb_addr(e, "v14", sW)
    e(f"v_add_u32 v15, {2*RSLOT}, v14")
    dskip_unpack(e)
    tap = [f"s_lshr_b32 s38, {sW}, 1", f"s_mul_i32 s39, s38, {4*TAPCH}", f"s_and_b32 s40, {sW}, 1",
           f"s_mul_i32 s40, s40, {TAPCH//2}", "s_add_u32 s39, s39, s40", f"s_add_u32 s39, s39, {L_PART}",
           "v_add_u32 v112, s39, v0"]
    for rnd in range(2):
        b = 92 + 4 * rnd
        tap += [lambda q=q, b=b, rnd=rnd: lg.op(f"ds_read_b128 {R(b + 4*q)}, v112 offset:{1024*rnd + TAPCH*q}", ("tap", rnd))
                for q in range(4)]
        if rnd == 0:
            tap += [f"s_lshl_b32 s39, {sQ}, 1", f"s_add_u32 s39, s39, {sTY}", "s_lshl_b32 s39, s39, 1",
                    "s_add_u32 s39, s39, s38", f"s_mul_i32 s39, s39, {TAPCH}", "s_add_u32 s39, s39, s40",
                    f"s_add_u32 s44, s39, {WS_KT}"]
        else:
            tap += ["s_nop 0"] * 4
        tap += [lambda rnd=rnd: lg.need(("tap", rnd))]
        for r in range(4):
            tap += [f"v_add_f32 v{b+r}, v{b+r}, v{b+4+r}", f"v_add_f32 v{b+8+r}, v{b+8+r}, v{b+12+r}"]
        tap += [f"v_add_f32 v{b+r}, v{b+r}, v{b+8+r}" for r in range(4)]

        def st(rnd=rnd, b=b):
            if rnd:
                e(f"s_mov_b64 exec, {(1 << 18) - 1}")
            vm.op(f"buffer_store_dwordx4 {R(b)}, v0, {SR(S_WS)}, s44 offen offset:{1024*rnd} sc1")
            if rnd:
                e("s_mov_b64 exec, -1")
        tap += [st]
    tap = [op for op in tap if op != "s_nop 0"]
    clr = [f"s_lshl_b32 s48, {sW}, 1"] + [f"v_mov_b32 v{116+r}, -1" for r in range(4)]
    clr += ["v_lshrrev_b32 v13, 3, v1", "v_lshlrev_b32 v13, 14, v13", "v_and_b32 v115, 7, v1",
            "v_lshl_add_u32 v13, v115, 4, v13", f"s_and_b32 s49, {sW}, 1", f"s_xor_b32 s49, s49, {sTY}",
            "s_add_u32 s49, s49, s48",
            "s_lshl_b32 s49, s49, 18", f"s_lshl_b32 s40, {sQ}, 7", "s_add_u32 s49, s49, s40",
            f"s_add_u32 s49, s49, {WS_X2}",
            lambda: vm.op(f"buffer_store_dwordx4 {R(116)}, v13, {SR(S_WS)}, s49 offen sc1"), "s_add_u32 s49, s49, 131072",
            lambda: vm.op(f"buffer_store_dwordx4 {R(116)}, v13, {SR(S_WS)}, s49 offen sc1")]
    if CLR1 >= 0:
        e(f"s_lshl_b32 s48, {sW}, 1")
        run(e, clear_set(e, vm, 0, 116, "s48", 2, 114))
    if CLR_AT < 0:
        run(e, clr)
    tm.stamp(4)
    ingest(e, lg, vm, 0, "v14", "v15", (0, 1), p_wreg)
    tm.stamp(3)
    run(e, p_gemm(lg, 0, 0, True))
    run(e, sum(K0[KSPLIT:], []))
    sides = ksched(K1, U, WRT) + [tap + [lambda: wo_src(e, "v4", "v112", "v113")], wo_issue(e, "v4", 0, WO_EARLY)]
    if CLR_AT >= 0:
        sides[CLR_AT] = sides[CLR_AT] + clr
    for S in range(8):
        ingest(e, lg, vm, S + 1, "v14", "v15", (0, 1), p_wreg)
        tm.stamp(46 + S)
        if S == FLAG_AT - 2:
            e(f"s_cmp_eq_u32 {sW}, 0")
            e("s_cselect_b64 exec, 1, 0")
            vm.op(f"buffer_load_dword v9, off, {SR(S_DBG)}, 0 sc1", "go")
            e("s_mov_b64 exec, -1")
        if S == FLAG_AT:
            vm.need("go")
            e("v_readfirstlane_b32 s38, v9")
            e(f"s_or_b32 s38, s38, {sW}")
            e("s_cbranch_scc1 p_go_x")
            e.loop_begin("p_go")
            e("s_sleep 4")
            e(f"buffer_load_dword v9, off, {SR(S_DBG)}, 0 sc1")
            e("s_add_u32 s38, s38, 1")
            e("s_waitcnt vmcnt(0)")
            e("v_cmp_eq_u32 vcc, 0, v9")
            e(f"s_cmp_gt_u32 s38, {SPIN}")
            e("s_cbranch_scc1 p_go_x")
            e.loop_end("s_cbranch_vccnz p_go", "p_go")
            e.settle()
            e.label("p_go_x")
            e(f"s_cmp_eq_u32 {sW}, 0")
            e("s_cselect_b64 exec, 1, 0")
            flag_publish(e, vm, 8, 0)
            e("s_mov_b64 exec, -1")
        att1_stage(e, vm, S, sides[S], ("W" if "tW" in X else "wo", 12),
                   p_gemm(lg, 2 * S, 2 * S + 2, True, pre_issued=True, next_s=2 * S + 2 if S < 7 else None))
    for r in range(4):
        e(f"v_mov_b32_dpp v{P_CSQ+r}, v{P_CSQ+r} row_newbcast:0 row_mask:0xf bank_mask:0xf")
        e(f"v_mov_b32_dpp v{P_CSK+r}, v{P_K+r} row_newbcast:0 row_mask:0xf bank_mask:0xf")
    p_setup_att(e)
    if "noB1b" in X:
        e("s_waitcnt vmcnt(0)")
    tm.flush()
    e.settle()
    e.label("p_common")
    e.reset_hist()
    lg.reset()
    tm.stamp((5, 24))
    e("s_barrier")
    tm.stamp((6, 24))
    p_attention(e, lg, tm)
    tm.stamp((7, 24))
    p_ogather(e, lg, tm)
    tm.flush()
    p_conv(e, lg, tm)
    tm.flush()
    e(f"s_cmp_eq_u32 {sLAY}, 1")
    e("s_cbranch_scc1 k_done")
    stop(e, tm, "conv1")
    next_layer(e)
    e("v_xor_b32 v10, 64, v2")
    e("v_xor_b32 v11, 64, v3")
    stage_x2(e, "p_x2poll", 16, tm)
    lg.reset()
    if CLRCONV:
        e(f"s_cmp_eq_u32 {sW}, 0")
        e("s_cselect_b64 exec, 1, 0")
        flag_publish(e, vm, 101, 1)
        e("s_mov_b64 exec, -1")
        run(e, p_gemm(lg, 0, 16, False))
    else:
        e(f"s_lshl_b32 s48, {sW}, 1")
        weave(e, p_gemm(lg, 0, 4, False, next_s=4), clear_set(e, vm, 1, 100, "s48", 2) if "noclr2" not in X else [])
        run(e, p_gemm(lg, 4, PUB_AT, False, pre_issued=True, next_s=PUB_AT))
        e(f"v_mov_b32 v100, {L_CNT + 8}")
        e("v_mov_b32 v101, 1")
        e("s_waitcnt vmcnt(0)")
        e("s_mov_b64 exec, 1")
        lg.op("ds_add_rtn_u32 v102, v100, v101", "pub")
        e("s_mov_b64 exec, -1")
        run(e, p_gemm(lg, PUB_AT, PUB_AT + 1, False, pre_issued=True, next_s=PUB_AT + 1))
        lg.need("pub")
        e("v_readfirstlane_b32 s39, v102")
        e("s_cmp_eq_u32 s39, 3")
        e("s_cselect_b64 exec, 1, 0")
        flag_publish(e, vm, 101, 1)
        e("s_mov_b64 exec, -1")
        run(e, p_gemm(lg, PUB_AT + 1, 16, False, pre_issued=True))
    tm.flush()
    e.settle()
    e("s_branch p_common")


V_W, V_CS = 188, 252
V_A, V_G1, V_S1, V_G0, V_ONE, V_F = 16, 36, 40, 44, 48, 52
V_XS = ["v2", "v3", "v7", "v8", "v9"]
V_XO = ["v10", "v11", "v12", "v13", "v14"]
V_RES, V_WO, V_ACC = 24, 48, 32


def v_wreg(s, n):
    return V_W + 4 * s


def v_gemm(lg, s0, s1, pre_issued=False, next_s=None):
    def reads(s):
        return [lambda s=s, u=u: lg.op(f"ds_read_b128 {R(V_F + 20*(s & 1) + 4*u)}, {(V_XS, V_XO)[s & 1][u]} offset:{(s >> 1)*2048}", ("x", s, u))
                for u in range(5)]
    ops = [] if pre_issued else reads(s0)
    e = lg.e
    for s in range(s0, s1):
        F = lambda u: R(V_F + 20 * (s & 1) + 4 * u)
        ms = []
        for u, c, a_, b_ in ((0, V_A, F(0), R(V_W + 4 * s)), (0, V_G0, F(0), F(0)), (1, V_A + 4, F(1), R(V_W + 4 * s)),
                             (1, V_G1, F(1), F(1)), (1, V_S1, R(V_ONE), F(1)), (2, V_A + 8, F(2), R(V_W + 4 * s)),
                             (3, V_A + 12, F(3), R(V_W + 4 * s)), (4, V_A + 16, F(4), R(V_W + 4 * s))):
            def m(s=s, u=u, c=c, a_=a_, b_=b_):
                lg.need(("x", s, u), ("w", s))
                e(f"{MF} {R(c)}, {a_}, {b_}, {'0' if s == 0 else R(c)}")
            ms.append(m)
        nx = s + 1 if s + 1 < s1 else next_s
        side = reads(nx) if nx is not None else []
        for i, m in enumerate(ms):
            ops.append(m)
            if i >= 1 and side:
                ops.append(side.pop(0))
        ops += side
    return ops


def v_slots(e):
    xf_addr(e, "v2")
    for u in range(1, 5):
        e(f"s_add_u32 s38, {sWQ}, {u-1}")
        e("s_and_b32 s38, s38, 3")
        e("s_add_u32 s38, s38, 1")
        e(f"s_mov_b32 s{51+u}, s38")
        e("s_lshl_b32 s38, s38, 14")
        e(f"v_add_u32 {V_XS[u]}, s38, v2")
    for u in range(5):
        e(f"v_xor_b32 {V_XO[u]}, 64, {V_XS[u]}")
    for r in range(4):
        e(f"v_mov_b32 v{V_ONE+r}, 0x3f803f80")


def wo_src(e, dst, t0="v10", t1="v11"):
    e(f"v_lshrrev_b32 {t0}, 5, v1")
    e(f"v_bfe_u32 {t1}, v1, 3, 2")
    e(f"v_lshl_add_u32 {dst}, {t0}, 3, {t1}")
    e(f"v_lshlrev_b32 {dst}, 10, {dst}")
    e(f"v_bfe_u32 {t1}, v1, 1, 2")
    e(f"v_lshrrev_b32 {t0}, 4, v1")
    e(f"v_xor_b32 {t1}, {t1}, {t0}")
    e(f"v_lshl_add_u32 {dst}, {t1}, 5, {dst}")
    e(f"v_and_b32 {t1}, 1, v1")
    e(f"v_lshl_add_u32 {dst}, {t1}, 4, {dst}")
    e(f"s_and_b32 s38, {sHG}, 3")
    e("s_lshl_b32 s38, s38, 8")
    e(f"s_lshr_b32 s39, {sWQ}, 1")
    e("s_lshl_b32 s39, s39, 14")
    e("s_add_u32 s38, s38, s39")
    e(f"s_and_b32 s39, {sWQ}, 1")
    e("s_lshl_b32 s39, s39, 12")
    e("s_add_u32 s38, s38, s39")
    e(f"v_add_u32 {dst}, s38, {dst}")


WO_EARLY = 6


def wo_issue(e, src, c0, c1):
    base = L_WOA + 8192 * c0 if c0 < WO_EARLY else 8192 * (c0 - WO_EARLY)
    ops = []
    for c in range(c0, c1):
        for seg in range(2):
            def one(c=c, seg=seg):
                if c == c0 and seg == 0:
                    e(f"s_lshl_b32 m0, {sWQ}, 11")
                    e(f"s_add_u32 m0, m0, {base}")
                else:
                    e(f"s_add_u32 m0, m0, {1024 if seg else 7168}")
                e(f"s_mov_b32 s38, {c*32768 + seg*128}")
                e(f"buffer_load_dwordx4 {src}, {SR(S_WO)}, s38 offen lds")
            ops.append(one)
    return ops


VP_N, VP_G, VP_EPS, VP_Q, VP_V, VP_HQ, VP_HV, VP_CNT, VP_1, VP_R, VP_VA, VP_XA, VP_T = 164, 165, 166, 167, 168, 169, 170, 171, 172, 173, 175, 180, 185


def v_post_pre():
    n, g, t, r = f"v{VP_N}", f"v{VP_G}", f"v{VP_T}", f"v{VP_R}"
    o = [f"v_and_b32 {n}, 15, v1", f"v_lshrrev_b32 {g}, 4, v1",
         f"v_and_b32 {t}, 1, v1", f"v_cmp_eq_u32 s[40:41], 1, {t}", f"v_and_b32 {t}, 2, v1", f"v_cmp_eq_u32 s[42:43], 2, {t}",
         f"s_mov_b32 s44, {hx(f2u(1.0/512))}", f"v_mov_b32 v{VP_EPS}, {hx(f2u(1e-5))}",
         "s_lshl_b32 s45, s52, 7", f"s_add_u32 s45, s45, {L_STQ}", f"v_lshl_add_u32 v{VP_Q}, {n}, 3, s45",
         "s_lshl_b32 s45, s52, 6", f"s_add_u32 s45, s45, {L_STV}", f"v_lshl_add_u32 v{VP_V}, {n}, 2, s45",
         f"v_lshlrev_b32 v{VP_HQ}, 3, {n}", f"v_lshlrev_b32 v{VP_HV}, 2, {n}",
         f"v_add_u32 v{VP_HQ}, {L_STQ}, v{VP_HQ}", f"v_add_u32 v{VP_HV}, {L_STV}, v{VP_HV}",
         f"v_mov_b32 v{VP_CNT}, {L_CNT}", f"v_mov_b32 v{VP_1}, 1",
         f"s_and_b32 s45, {sWQ}, 1", "s_lshl_b32 s45, s45, 2",
         f"v_lshrrev_b32 {t}, 1, {g}", f"v_xor_b32 {t}, {t}, {n}", f"v_xor_b32 {t}, s45, {t}", f"v_and_b32 {t}, 7, {t}",
         f"v_and_b32 {r}, 7, {n}", f"v_lshlrev_b32 {r}, 8, {r}", f"v_lshl_add_u32 {r}, {t}, 4, {r}",
         f"v_lshrrev_b32 {t}, 3, {n}", f"v_lshl_add_u32 {r}, {t}, 14, {r}",
         f"v_and_b32 {t}, 1, {g}", f"v_lshl_add_u32 {r}, {t}, 3, {r}",
         f"s_lshr_b32 s45, {sHG}, 2", "s_lshl_b32 s45, s45, 15", f"s_and_b32 s46, {sHG}, 3", "s_lshl_b32 s46, s46, 12",
         "s_add_u32 s45, s45, s46", f"s_lshr_b32 s46, {sWQ}, 1", "s_lshl_b32 s46, s46, 11", "s_add_u32 s45, s45, s46",
         "s_add_u32 s45, s45, 16384", f"v_add_u32 {r}, s45, {r}", f"v_xor_b32 v{VP_R+1}, 32, {r}",
         f"v_lshlrev_b32 v{VP_VA}, 4, {g}", f"v_add_u32 v{VP_VA}, {L_STV}, v{VP_VA}",
         f"s_mul_i32 s45, {sWQ}, 2560", f"s_add_u32 s45, s45, {L_VX}", f"v_lshl_add_u32 v{VP_XA}, v1, 3, s45"]
    for u in range(1, 5):
        o += [f"s_lshl_b32 s45, s{51+u}, 6", f"v_add_u32 v{VP_VA+u}, s45, v{VP_VA}",
              f"s_lshl_b32 s45, s{51+u}, 9", f"v_add_u32 v{VP_XA+u}, s45, v{VP_XA}"]
    return o + [f"s_lshl_b32 s45, {sLAY}, 2", "s_add_u32 s45, s45, 4"]


def v_post(e, lg, tm):
    T = 52
    eps = f"v{VP_EPS}"
    e(f"v_mov_b32 v{T+2}, v{V_G0}")
    e(f"v_mov_b32 v{T+3}, v{V_G0}")
    e(f"v_permlane16_swap_b32 v{T+2}, v{T+3}")
    e(f"v_mov_b32 v{T+3}, v{T+2}")
    e(f"v_permlane32_swap_b32 v{T+2}, v{T+3}")
    for g_, d in ((V_G1, T + 1), (V_G0, T + 3)):
        e(f"v_cndmask_b32 v{T+4}, v{g_}, v{g_+1}, s[40:41]")
        e(f"v_cndmask_b32 v{T+5}, v{g_+2}, v{g_+3}, s[40:41]")
        e(f"v_cndmask_b32 v{d}, v{T+4}, v{T+5}, s[42:43]")
    e(f"v_mul_f32 v{T}, s44, v{V_S1}")
    e(f"v_mul_f32 v{T+2}, s44, v{T+2}")
    for d in (T, T + 2):
        e(f"v_fma_f32 v{d+1}, v{d+1}, s44, {eps}")
    for d in (T, T + 2):
        e(f"v_fma_f32 v{d+1}, -v{d}, v{d}, v{d+1}")
    for d in (T, T + 2):
        e(f"v_max_f32 v{d+1}, {eps}, v{d+1}")
    for d in (T, T + 2):
        e(f"v_sqrt_f32 v{d+1}, v{d+1}")
    e(f"v_cvt_pk_bf16_f32 v{T+4}, v{T}, v{T+2}")
    e(f"v_cvt_pk_bf16_f32 v{T+5}, v{T+1}, v{T+3}")
    e(f"v_lshlrev_b32 v{T}, 16, v{T+4}")
    e(f"v_and_b32 v{T+2}, 0xffff0000, v{T+4}")
    e(f"v_lshlrev_b32 v{T+1}, 16, v{T+5}")
    e(f"v_and_b32 v{T+3}, 0xffff0000, v{T+5}")
    e(f"v_rcp_f32 v{T+1}, v{T+1}")
    e(f"v_rcp_f32 v{T+3}, v{T+3}")
    e("s_mov_b32 exec_lo, 0x00f0000f")
    e("s_mov_b32 exec_hi, 0xf0000f00")
    e(f"ds_write_b32 v{VP_V}, v{T}")
    e(f"ds_write_b32 v{VP_V}, v{T+1} offset:320")
    e(f"ds_write_b32 v{VP_HV}, v{T+2}")
    e(f"ds_write_b32 v{VP_HV}, v{T+3} offset:320")
    e("s_mov_b64 exec, 1")
    e(f"ds_add_u32 v{VP_CNT}, v{VP_1}")
    e("s_mov_b32 exec_lo, 0x00f0000f")
    e("s_mov_b32 exec_hi, 0xf0000f00")
    e(f"ds_write_b64 v{VP_Q}, v[{T}:{T+1}]")
    e(f"ds_write_b64 v{VP_HQ}, v[{T+2}:{T+3}]")
    e("s_mov_b64 exec, -1")
    VS, RES = 56, 106
    for ct in range(2):
        e(f"ds_read_b64 v[{RES+4*ct}:{RES+4*ct+1}], v{VP_R+ct}")
        e(f"ds_read_b64 v[{RES+4*ct+2}:{RES+4*ct+3}], v{VP_R+ct} offset:128")
    e("s_mov_b32 s38, 0")
    e.loop_begin("v_spin")
    e(f"ds_read_b32 v13, v{VP_CNT}")
    for u in range(5):
        e(f"ds_read_b128 {R(VS+8*u)}, v{VP_VA+u}")
        e(f"ds_read_b128 {R(VS+8*u+4)}, v{VP_VA+u} offset:320")
    e("s_add_u32 s38, s38, 1")
    e("s_waitcnt lgkmcnt(10)")
    e("v_cmp_gt_u32 vcc, s45, v13")
    e(f"s_cmp_gt_u32 s38, {SPIN}")
    e("s_cbranch_scc1 v_spin_x")
    e.loop_end("s_cbranch_vccnz v_spin", "v_spin")
    e.label("v_spin_x")
    for u in range(5):
        c = V_A + 4 * u
        e(f"s_waitcnt lgkmcnt({8 - 2*u})")
        for h in range(2):
            e(f"v_pk_fma_f32 v[{c+2*h}:{c+2*h+1}], v[{VS+8*u+2*h}:{VS+8*u+2*h+1}], v[{V_CS}:{V_CS+1}], v[{c+2*h}:{c+2*h+1}] op_sel_hi:[1,0,1] neg_lo:[1,0,0] neg_hi:[1,0,0]")
    for u in range(5):
        c = V_A + 4 * u
        for h in range(2):
            e(f"v_pk_mul_f32 v[{c+2*h}:{c+2*h+1}], v[{c+2*h}:{c+2*h+1}], v[{VS+8*u+4+2*h}:{VS+8*u+4+2*h+1}]")
    for u in range(5):
        c = V_A + 4 * u
        e(f"v_cvt_pk_bf16_f32 v{c}, v{c}, v{c+1}")
        e(f"v_cvt_pk_bf16_f32 v{c+1}, v{c+2}, v{c+3}")
        e(f"ds_write_b64 v{VP_XA+u}, v[{c}:{c+1}]")
    e("s_waitcnt lgkmcnt(0)")


def v_proj(e, lg, vm, tm):
    for r in range(8):
        e(f"v_mov_b32 v{V_RES+r}, v{106+r}")
    wo_src(e, "v4")
    vm.reset()
    e("v_lshrrev_b32 v14, 5, v1")
    e("v_lshlrev_b32 v14, 12, v14")
    e("v_bfe_u32 v10, v1, 2, 3")
    e("v_lshl_add_u32 v14, v10, 7, v14")
    e(f"s_and_b32 s38, {sWQ}, 1")
    e("s_lshl_b32 s38, s38, 1")
    e("v_bfe_u32 v10, v1, 3, 2")
    e("v_xor_b32 v10, s38, v10")
    e("v_lshl_add_u32 v14, v10, 5, v14")
    e("v_and_b32 v10, 3, v1")
    e("v_lshl_add_u32 v14, v10, 3, v14")
    e(f"s_lshr_b32 s38, {sWQ}, 1")
    e("s_lshl_b32 s38, s38, 10")
    e("v_add_u32 v14, s38, v14")
    e("v_xor_b32 v15, 32, v14")
    e(f"v_add_u32 v12, {L_WOA}, v14")
    e(f"v_add_u32 v13, {L_WOA}, v15")

    def frags(c):
        for ct in range(2):
            for hi in range(2):
                r = V_WO + 8 * c + 4 * ct + 2 * hi
                b, off = (12 + ct, 8192 * c) if c < WO_EARLY else (14 + ct, 8192 * ((c - WO_EARLY) & 7))
                e(f"ds_read_b64_tr_b16 v[{r}:{r+1}], v{b} offset:{off + 2048*hi}")
    late = wo_issue(e, "v4", WO_EARLY, 16)
    if "noB1b" not in X:
        run(e, late[:3])
        late = late[3:]
        e(f"s_cmp_eq_u32 {sLAY}, 0")
        e("s_cbranch_scc0 v_b1b")
        e("s_barrier")
        e.label("v_b1b")
    for c in range(WO_EARLY):
        run(e, late[c:c + 1])
        frags(c)
    run(e, late[WO_EARLY:])
    tm.stamp((7, 24))
    e("s_waitcnt vmcnt(0) lgkmcnt(0)")
    e("s_barrier")
    for c in range(WO_EARLY, 16):
        if c == WO_EARLY + 8:
            e("v_add_u32 v14, 0x10000, v14")
            e("v_add_u32 v15, 0x10000, v15")
        frags(c)
    tm.stamp((8, 24))
    e("v_and_b32 v6, 15, v1")
    e("v_lshrrev_b32 v7, 4, v1")
    e("v_lshlrev_b32 v5, 4, v6")
    e("v_lshl_add_u32 v184, v7, 9, v5")
    e(f"v_add_u32 v184, {L_OT}, v184")
    e("v_lshl_add_u32 v185, v7, 14, v5")
    e(f"v_add_u32 v186, {L_SP}, v5")
    e(f"s_lshl_b32 s38, {sWQ}, 8")
    e("v_add_u32 v187, s38, v186")
    xq_base(e, "s44", sXQ)
    e(f"s_lshl_b32 s38, {sWQ}, 17")
    e("s_add_u32 s44, s44, s38")
    e("s_add_u32 s45, s44, 65536")
    st_base(e, "s46", sST)
    e("s_mov_b32 s47, 0xffff0000")
    e("s_waitcnt lgkmcnt(0)")
    tm.stamp((9, 24))
    e("s_barrier")
    e("s_setprio 2")
    tm.stamp((10, 24))
    lg.reset()
    BR = [8, 16, 176]

    def rd(s):
        for rt in range(2):
            lg.op(f"ds_read_b128 {R(BR[s % 3] + 4*rt)}, v184 offset:{2048*s + 256*rt}", ("o", s, rt))
    rd(0)
    rd(1)
    for s in range(16):
        for rt in range(2):
            for ct in range(2):
                lg.need(("o", s, rt))
                c = V_ACC + 4 * (2 * ct + rt)
                e(f"{MF} {R(c)}, {R(V_WO + 8*s + 4*ct)}, {R(BR[s % 3] + 4*rt)}, {'0' if s == 0 else R(c)}")
                if rt == 0 and ct == 0 and s + 2 < 16:
                    rd(s + 2)
    tm.stamp((11, 24))
    A_, X_, O_, S_ = 48, 64, 80, 88
    for q in range(2):
        for j in range(4):
            e(f"v_cvt_pk_bf16_f32 v{O_+4*q+j}, v{V_ACC+8*q+2*j}, v{V_ACC+8*q+2*j+1}")
    for j in range(8):
        e(f"v_lshlrev_b32 v{X_+2*j}, 16, v{V_RES+j}")
        e(f"v_and_b32 v{X_+2*j+1}, s47, v{V_RES+j}")
    for j in range(8):
        e(f"v_lshlrev_b32 v{A_+2*j}, 16, v{O_+j}")
        e(f"v_and_b32 v{A_+2*j+1}, s47, v{O_+j}")
    for j in range(16):
        e(f"v_add_f32 v{A_+j}, v{A_+j}, v{X_+j}")
    for j in range(8):
        e(f"v_cvt_pk_bf16_f32 v{O_+j}, v{A_+2*j}, v{A_+2*j+1}")
    for ct in range(2):
        e(f"v_min_u32 v{O_+4*ct+3}, -2, v{O_+4*ct+3}")
        e(f"buffer_store_dwordx4 {R(O_+4*ct)}, v185, {SR(S_WS)}, s{44+ct} offen sc1")
    e(f"v_mov_b32 v{S_+4}, 0x3f803f80")
    for r in range(4):
        e(f"v_mov_b32 v{S_+r}, 0")
    for ct in range(2):
        for h in range(2):
            for rt in range(2):
                o_ = O_ + 4 * ct + 2 * rt + h
                e(f"v_dot2c_f32_bf16 v{S_+2*rt}, v{o_}, v{S_+4}")
                e(f"v_dot2c_f32_bf16 v{S_+2*rt+1}, v{o_}, v{o_}")
    run(e, gswap([f"v{S_+r}" for r in range(4)], [f"v{S_+4+r}" for r in range(4)], "v_add_f32"))
    e(f"v_mov_b32 v{S_+4}, {L_CNT + 4}")
    e(f"v_mov_b32 v{S_+5}, 1")
    e("s_mov_b64 exec, 0xffff")
    e(f"ds_write_b128 v187, {R(S_)}")
    e("s_mov_b64 exec, 1")
    e(f"ds_add_rtn_u32 v{S_+6}, v{S_+4}, v{S_+5}")
    e("s_mov_b64 exec, 0xffff")
    for w in range(4):
        e(f"ds_read_b128 {R(A_+4*w)}, v186 offset:{256*w}")
    e("s_waitcnt lgkmcnt(4)")
    e(f"v_readfirstlane_b32 s38, v{S_+6}")
    e("s_and_b32 s38, s38, 3")
    e("s_cmp_eq_u32 s38, 3")
    e("s_cbranch_scc0 v_nolast")
    e("s_waitcnt lgkmcnt(0)")
    for r in range(4):
        e(f"v_add_f32 v{A_+r}, v{A_+r}, v{A_+4+r}")
        e(f"v_add_f32 v{A_+8+r}, v{A_+8+r}, v{A_+12+r}")
    for r in range(4):
        e(f"v_add_f32 v{A_+r}, v{A_+r}, v{A_+8+r}")
    e(f"v_min_u32 v{A_+3}, -2, v{A_+3}")
    e(f"buffer_store_dwordx4 {R(A_)}, v5, {SR(S_WS)}, s46 offen sc1")
    e.label("v_nolast")
    e("s_setprio 0")
    e("s_mov_b64 exec, -1")
    tm.stamp((12, 24))


def v_conv(e, lg, vm, tm):
    ACC, BR, AS, AR = 16, 32, 48, 64
    NRES = 31
    e("v_and_b32 v10, 15, v1")
    e("v_lshrrev_b32 v11, 4, v1")
    e("v_and_b32 v12, 3, v1")
    e(f"v_mul_u32_u24 v2, {KCOPY}, v12")
    e("v_bfe_u32 v12, v1, 2, 2")
    e("v_lshlrev_b32 v12, 3, v12")
    e("v_sub_u32 v2, v2, v12")
    e("v_lshl_add_u32 v2, v11, 4, v2")
    e(f"s_mul_i32 s38, {sWQ}, {KCH}")
    e(f"s_add_u32 s38, s38, {L_KT + 24}")
    e("v_add_u32 v2, s38, v2")
    e("v_lshlrev_b32 v3, 5, v10")
    e("v_lshl_add_u32 v7, v11, 3, v3")
    e("v_lshl_add_u32 v3, v11, 4, v3")
    e(f"s_mul_i32 s38, {sWQ}, {USTR}")
    e(f"s_add_u32 s38, s38, {L_U + 32}")
    e("v_add_u32 v3, s38, v3")
    e(f"s_lshl_b32 s38, {sWQ}, 9")
    e(f"s_add_u32 s38, s38, {L_Y}")
    e("v_add_u32 v7, s38, v7")
    e("s_waitcnt lgkmcnt(0)")
    e("s_barrier")
    tm.stamp((13, 24))
    if "wopre" in X:
        e(f"s_cmp_eq_u32 {sLAY}, 0")
        e("s_cbranch_scc0 v_nopre")
        run(e, wo_issue(e, "v4", 0, WO_EARLY))
        e.label("v_nopre")

    def ldA(c, r, tag):
        for hi in range(2):
            lg.op(f"ds_read_b64 v[{r+2*hi}:{r+2*hi+1}], v2 offset:{64*(63-c) + 8*hi}", tag)
    lg.reset()
    for c in range(NRES):
        ldA(c, AR + 4 * c, ("A", c))
    e("s_waitcnt lgkmcnt(0)")
    e("s_barrier")
    tm.stamp((14, 24))
    e(f"s_cmp_eq_u32 {sTY}, 0")
    e("s_cbranch_scc0 v_conv1")
    for ty, tiles in ((0, (0, 3, 4, 7)), (1, (1, 2, 5, 6))):
        e.label(f"v_conv{ty}")
        e.reset_hist()
        lg.reset()
        segs = [range(-7, 9), range(9, 25), range(25, 41), range(41, 57)]
        ms = [(k, f, ti, 8 * q - f) for k in range(4) for f in segs[k] for ti, q in enumerate(tiles)
              if 0 <= 8 * q - f <= 8 * q + 7]
        sa = [i for i, m in enumerate(ms) if m[3] >= NRES]
        sidx = {i: n for n, i in enumerate(sa)}
        fl = sorted(set(m[1] for m in ms))
        lastuse = {}
        for i, m in enumerate(ms):
            lastuse[m[1]] = i
        seg_of = {m[1]: m[0] for m in ms}
        nA = nB = 0
        started = set()
        cur = -1
        wo = wo_issue(e, "v4", 0, WO_EARLY) if "wopre" not in X else []
        w0 = min(i for i, m in enumerate(ms) if m[0] == WOSEG)
        for i, (k, f, ti, c) in enumerate(ms):
            if wo and i > w0 and (i - w0) % WOSTEP == 0:
                wo.pop(0)()
            if k != cur:
                if cur >= 0:
                    lg.all()
                    e("s_barrier")
                    tm.stamp((14 + k, 24))
                cur = k
            fi = fl.index(f)
            while nB < len(fl) and nB <= fi + 3 and seg_of[fl[nB]] <= k and (nB < 4 or lastuse[fl[nB - 4]] < i):
                lg.op(f"ds_read_b128 {R(BR + 4*(nB % 4))}, v3 offset:{64*(fl[nB]+7)}", ("B", fl[nB]))
                nB += 1
            done = len([j for j in sa if j < i])
            while nA < len(sa) and nA < done + 4 and nA <= done + 3:
                ldA(ms[sa[nA]][3], AS + 4 * (nA % 4), ("S", nA))
                nA += 1
            lg.need(("B", f))
            if c >= NRES:
                lg.need(("S", sidx[i]))
                a_ = AS + 4 * (sidx[i] % 4)
            else:
                a_ = AR + 4 * c
            acc = R(ACC + 4 * ti)
            e(f"{MF} {acc}, {R(a_)}, {R(BR + 4*(fi % 4))}, {acc if ti in started else '0'}")
            started.add(ti)
            for j in ((i - 2, i) if (i + 1 == len(ms) or ms[i + 1][0] != k) else (i - 2,)):
                pass
            fin = [j for j in range(max(0, i - 2), i + 1) if ms[j][3] == 0 and ms[j][0] == k]
            endseg = i + 1 == len(ms) or ms[i + 1][0] != k
            for j in fin:
                if (j == i - 2 or endseg) and ("Y", k) not in lg.tags:
                    t_ = ACC + 4 * ms[j][2]
                    e(f"v_cvt_pk_bf16_f32 v8, v{t_}, v{t_+1}")
                    e(f"v_cvt_pk_bf16_f32 v9, v{t_+2}, v{t_+3}")
                    lg.op(f"ds_write_b64 v7, v[8:9] offset:{2048*k}", ("Y", k))
        assert not wo
        lg.all()
        e("s_barrier")
        tm.stamp((18, 24))
        tm.flush()
        if ty == 0:
            e("s_branch v_conv_done")
    e.label("v_conv_done")


def gen_V(e, tm, lg, vm):
    K0 = kgen(KP0, KT0, lg, vm)[2]
    P0, P1, _, K1, U, WRT = kgen(KP0, 116, lg, vm)
    vb_addr(e, "v15", sWQ)
    e(f"v_add_u32 v160, {2*RSLOT}, v15")
    v_slots(e)
    ingest(e, lg, vm, 0, "v15", "v160", (2,), v_wreg)
    tm.stamp(3)
    run(e, v_gemm(lg, 0, 0))
    run(e, sum(K0[KSPLIT:], []))
    sides = ksched(K1, U, WRT) + [v_post_pre(), []]
    for S in range(8):
        ingest(e, lg, vm, S + 1, "v15", "v160", (2,), v_wreg)
        tm.stamp(46 + S)
        att1_stage(e, vm, S, sides[S], ("wo", 148) if "tW" in X else None,
                   v_gemm(lg, 2 * S, 2 * S + 2, pre_issued=True, next_s=2 * S + 2 if S < 7 else None))
    e(f"v_mov_b32 v{V_CS}, v{V_A}")
    e(f"v_mov_b32 v{V_CS+1}, v{V_A}")
    e(f"v_permlane16_swap_b32 v{V_CS}, v{V_CS+1}")
    e(f"v_mov_b32 v{V_CS+1}, v{V_CS}")
    e(f"v_permlane32_swap_b32 v{V_CS}, v{V_CS+1}")
    tm.flush()
    e.settle()
    e.label("v_common")
    e.reset_hist()
    lg.reset()
    tm.stamp((21, 24))
    v_post(e, lg, tm)
    e("s_waitcnt vmcnt(0)")
    e("s_setprio 0")
    tm.stamp((5, 24))
    e("s_barrier")
    tm.stamp((6, 24))
    v_proj(e, lg, vm, tm)
    tm.flush()
    v_conv(e, lg, vm, tm)
    e("s_waitcnt vmcnt(0)")
    e(f"s_cmp_eq_u32 {sLAY}, 1")
    e("s_cbranch_scc1 k_done")
    stop(e, tm, "conv1")
    next_layer(e)
    v_slots(e)
    stage_x2(e, "v_x2poll", 52, tm)
    e("s_setprio 1")
    lg.reset()
    weave(e, v_gemm(lg, 0, 16), v_post_pre())
    tm.flush()
    e.settle()
    e("s_branch v_common")


HEADER = open(os.path.join(os.path.dirname(os.path.abspath(__file__)), "header.txt")).read()


def main(out_path):
    e = Emitter()
    tm = Stamper(e)
    kn = NAME + "_kernel"
    e.raw(f".globl {kn}")
    e.raw(".p2align 8")
    e.raw(f".type {kn},@function")
    e.label(kn)
    lg, vm = Cnt(e, "lgkmcnt", 15), Cnt(e, "vmcnt", 63)
    prologue(e, tm, lg, vm)
    e(f"s_cmp_lt_u32 {sW}, 4")
    e.settle()
    e("s_cbranch_scc0 v_role")
    pend = list(tm.pend)
    st = (vm.n, vm.done, dict(vm.tags))
    gen_P(e, tm, lg, vm)
    e.label("v_role")
    e.reset_hist()
    tm.pend = pend
    lg.reset()
    vm.n, vm.done, vm.tags = st
    gen_V(e, tm, lg, vm)
    e.label("k_done")
    e.reset_hist()
    if STAMPS:
        e("v_writelane_b32 v255, s98, 61")
    tm.dump()
    e.label("k_exit")
    e("s_endpgm")
    txt = HEADER + "; Generated by gen/gen2.py (own generator script).\n"
    if os.environ.get("LIST", "0") == "1":
        txt += f"; @launch kernel={kn} grid=(256,1,1) block=(512,1,1) lds={LDS_BYTES}\n"
    else:
        txt += f"; @launch grid=(256,1,1) block=(512,1,1) lds={LDS_BYTES}\n"
    txt += '.amdgcn_target "amdgcn-amd-amdhsa--gfx950"\n.text\n' + e.text()
    txt += f'''.section .rodata,"a"
.p2align 6
.amdhsa_kernel {kn}
  .amdhsa_next_free_vgpr 256
  .amdhsa_next_free_sgpr 102
  .amdhsa_accum_offset 256
  .amdhsa_group_segment_fixed_size 0
  .amdhsa_kernarg_size 120
  .amdhsa_user_sgpr_count 2
  .amdhsa_user_sgpr_kernarg_segment_ptr 1
  .amdhsa_system_sgpr_workgroup_id_x 1
.end_amdhsa_kernel
'''
    open(out_path, "w").write(txt)


if __name__ == "__main__":
    main(sys.argv[1] if len(sys.argv) > 1 else os.path.join(os.path.dirname(os.path.abspath(__file__)), "..", NAME + ".s"))
```
